```python
import torch

def _softmax(x, axis=-1):
    return torch.softmax(x, dim=axis)
def _gelu(x):
    return torch.nn.functional.gelu(x, approximate="tanh")
def _silu(x):
    return torch.nn.functional.silu(x)
def _sigmoid(x):
    return torch.sigmoid(x)
def _layernorm(x, axis=-1, eps=1e-5):
    m = x.mean(dim=axis, keepdim=True)
    v = x.var(dim=axis, keepdim=True, unbiased=False)
    return (x - m) / torch.sqrt(v + eps)
def _scatter_add(tgt, idx, src, axis=0):
    return tgt.clone().index_add_(axis, idx, src)
def _segment_sum(src, seg, n):
    out = torch.zeros((n,) + src.shape[1:], dtype=src.dtype)
    return out.index_add_(0, seg, src)
def _pad(x, pw):
    flat = tuple(v for pair in reversed(pw) for v in pair)
    return torch.nn.functional.pad(x, flat)

kernel_name = 'interleave_layers__mha_block_cached__dense_activation_gelu__decode'

def setup_inputs():

    _w = (lambda a: (lambda t: t.to(torch.bfloat16) if t.is_floating_point() else t)(torch.as_tensor(a)))
    def _A_setup():
        B, Sq, D = 2, 1, 576
        H, Sk, Dh = 32, 8192, 128
        return {
            "x": _w((lambda *s: torch.randn(*s, dtype=torch.bfloat16) * 0.1)(B, Sq, D)),
            "k_cache": _w((lambda *s: torch.randn(*s, dtype=torch.bfloat16) * 0.8)(B, H, Sk, Dh)),
            "v_cache": _w((lambda *s: torch.randn(*s, dtype=torch.bfloat16) * 3.2)(B, H, Sk, Dh)),
            "wq": _w((lambda *s: torch.randn(*s, dtype=torch.bfloat16) * 0.8)(D, H * Dh) * (D ** -0.5)),
            "wo": _w((lambda *s: torch.randn(*s, dtype=torch.bfloat16) * 3.2)(H * Dh, D) * ((H * Dh) ** -0.5)),
        }
    _A_in = _A_setup()

    def _B_setup():
        B, S, D, F = 2, 1, 576, 4608
        return {
            "x": _w((lambda *s: torch.randn(*s, dtype=torch.bfloat16) * 0.1)(B, S, D)),
            "w1": _w((lambda *s: torch.randn(*s, dtype=torch.bfloat16) * 1.6)(D, F) * (D ** -0.5)),
            "b1": _w((lambda *s: torch.randn(*s, dtype=torch.bfloat16) * 1.6)(F) * 0.01),
            "w2": _w((lambda *s: torch.randn(*s, dtype=torch.bfloat16) * 0.4)(F, D) * (F ** -0.5)),
            "b2": _w((lambda *s: torch.randn(*s, dtype=torch.bfloat16) * 0.4)(D) * 0.01),
        }
    _B_in = _B_setup()

    return {
        "A_x": _A_in["x"],
        "A_k_cache": _A_in["k_cache"],
        "A_v_cache": _A_in["v_cache"],
        "A_wq": _A_in["wq"],
        "A_wo": _A_in["wo"],
        "B_x": _B_in["x"],
        "B_w1": _B_in["w1"],
        "B_b1": _B_in["b1"],
        "B_w2": _B_in["w2"],
        "B_b2": _B_in["b2"],
    }

def reference(A_x, A_k_cache, A_v_cache, A_wq, A_wo, B_x, B_w1, B_b1, B_w2, B_b2):
    def _A_ref(x, k_cache, v_cache, wq, wo):
        B, Sq, D = x.shape
        H, Dh = 32, 128
        q = (lambda x, *d: x.permute(*d))((x @ wq).reshape(B, Sq, H, Dh), 0, 2, 1, 3)
        scores = torch.einsum("bhqd,bhkd->bhqk", q, k_cache) * (Dh ** -0.5)
        p = _softmax(scores, axis=-1)
        o = torch.einsum("bhqk,bhkd->bhqd", p, v_cache)
        return (lambda x, *d: x.permute(*d))(o, 0, 2, 1, 3).reshape(B, Sq, H * Dh) @ wo

    def _B_ref(x, w1, b1, w2, b2):
        h = torch.einsum("bsd,df->bsf", x, w1) + b1
        h = _gelu(h)
        return torch.einsum("bsf,fd->bsd", h, w2) + b2

    x = A_x
    x = x + _A_ref(_layernorm(x, axis=-1), A_k_cache, A_v_cache, A_wq, A_wo)
    x = x + _B_ref(_layernorm(x, axis=-1), B_w1, B_b1, B_w2, B_b2)
    x = x + _A_ref(_layernorm(x, axis=-1), A_k_cache, A_v_cache, A_wq, A_wo)
    x = x + _B_ref(_layernorm(x, axis=-1), B_w1, B_b1, B_w2, B_b2)
    return x
```

```python
from gen import *
import kern
from kern import *

S_WQ, S_WO, S_W1, S_W2, S_X, S_B1, S_B2, S_OUT = 24, 28, 32, 36, 40, 44, 48, 52
sI, sKQ, sNQ, sIT, sN, sFAST, sT0, sT1, sT2, sCN = 4, 5, 6, 7, 8, 9, 10, 11, 12, 13
sW2K, sW9K, sQI, sROW = 56, 57, 58, 15
sG1, sG2, sG3, sHI = 60, 62, 64, 66
sRL = 70

VVEC, VACT, VHB, VCSC, VXR, VBB, VHD, VCSE, VW = 1, 2, 3, 4, 5, 9, 10, 11, 12

H_EL = 0
H_DL = 56 * 1024
H_D8 = 112 * 1024
H_C8 = 130 * 1024
BUF = [56 * 1024, 83 * 1024]
L_MISC = 148 * 1024
L_ACTA = L_MISC
L_ACTB = L_MISC + 1280
L_OACT = L_MISC + 2560
L_RED = L_MISC + 3584
L_ST = L_MISC + 5888
L_XIN = L_MISC + 6144
NE_REG = 11
NRING = 11

def home(idx):
    if idx < 52: return ("v", 48 + 4 * idx)
    return ("a", 4 * (idx - 52))
def hs(idx):
    k, r = home(idx); return f"{k}[{r}:{r+3}]"
def hs2(idx, half):
    k, r = home(idx); return f"{k}[{r+2*half}:{r+2*half+1}]"
H_E = {(ks, nt): ks * 2 + nt for ks in range(NE_REG) for nt in range(2)}
H_B = {(ks, nt): 22 + ks * 9 + nt for ks in range(4) for nt in range(9)}
H_C = {(ks, nt): 58 + ks * 2 + nt for ks in range(18) for nt in range(2)}
H_D = {(ks, nt): 94 + ks * 2 + nt for ks in range(NE_REG) for nt in range(2)}

class VM:
    def __init__(self, a): self.a, self.q = a, []
    def issue(self, tag, text): self.a(text); self.q.append(tag)
    def note(self, tag): self.q.append(tag)
    def wait(self, tag):
        if tag not in self.q: return
        i = len(self.q) - 1 - self.q[::-1].index(tag)
        n = len(self.q) - 1 - i
        assert n <= 62
        self.a(f"s_waitcnt vmcnt({n})")
        del self.q[:i + 1]
    def wait_all(self):
        self.a("s_waitcnt vmcnt(0)"); self.q = []

class LQ:
    def __init__(self, a): self.a, self.q = a, []
    def issue(self, tag, text): self.a(text); self.q.append(tag); assert len(self.q) <= 15, self.q
    def need(self, tag):
        if tag not in self.q: return
        i = len(self.q) - 1 - self.q[::-1].index(tag)
        self.a(f"s_waitcnt lgkmcnt({len(self.q) - 1 - i})")
        del self.q[:i + 1]
    def drain(self):
        if self.q: self.a("s_waitcnt lgkmcnt(0)")
        self.q = []

def pub_flags(a, emit):
    L1, L2 = a.newlabel("Lsf"), a.newlabel("Lsd")
    a(f"s_cmp_eq_u32 s{sFAST}, 0")
    a(f"s_cbranch_scc1 {L1}")
    emit("")
    a(f"s_branch {L2}")
    a.label(L1)
    emit("sc0 sc1")
    a.label(L2)

def lanes_lt(a, n):
    if n <= 32:
        a(f"s_mov_b32 exec_lo, {hex((1 << n) - 1) if n < 32 else -1}")
        a("s_mov_b32 exec_hi, 0")
    else:
        a("s_mov_b32 exec_lo, -1")
        a(f"s_mov_b32 exec_hi, {hex((1 << (n - 32)) - 1)}")
def lanes_all(a): a("s_mov_b64 exec, -1")

def sent_check(a, regs, tmp):
    regs = list(regs)
    if len(regs) >= 3:
        a(f"v_max3_u32 v{tmp}, v{regs[0]}, v{regs[1]}, v{regs[2]}"); regs = regs[3:]
    else:
        a(f"v_max_u32 v{tmp}, v{regs[0]}, v{regs[1]}"); regs = regs[2:]
    while regs:
        if len(regs) >= 2: a(f"v_max3_u32 v{tmp}, v{tmp}, v{regs[0]}, v{regs[1]}"); regs = regs[2:]
        else: a(f"v_max_u32 v{tmp}, v{tmp}, v{regs[0]}"); regs = regs[1:]
    a(f"v_cmp_eq_u32 vcc, -1, v{tmp}")

def poll(a, opt, loads, check):
    L, Lok = a.newlabel("Lpl"), a.newlabel("Lpk")
    a(f"s_mov_b32 s{sCN}, 0")
    a.label(L)
    loads()
    a("s_waitcnt vmcnt(0)")
    check()
    a(f"s_cbranch_vccz {Lok}")
    a(f"""s_add_u32 s{sCN}, s{sCN}, 1
    s_cmp_lt_u32 s{sCN}, {opt.spin}
    s_cbranch_scc1 {L}""")
    a.label(Lok)

class Stager:
    def __init__(self, a, opt, vm):
        self.a, self.opt, self.vm = a, opt, vm
        self.V4, self.V1 = [VW + 24, VW + 25], VW + 26
        self.VB = [VW + 32, VW + 33, VW + 34, VW + 35]
        self.V9 = [VW + 27, VW + 28, VW + 29]
        self.TMP = VW + 30
        self.cur = None
    def tr_lane(self, dst, rowshift):
        a = self.a; T = self.TMP
        a(f"""v_lshrrev_b32 v{T}, 4, v0
        v_bfe_u32 v{T+1}, v0, 2, 2
        v_lshl_add_u32 v{T}, v{T}, 3, v{T+1}
        v_lshlrev_b32 v{T}, {rowshift}, v{T}
        v_and_b32 v{T+1}, 3, v0
        v_lshl_add_u32 v{dst}, v{T+1}, 3, v{T}""")
    def tr_lane_sw(self, dst, wave_term):
        a = self.a; T = self.TMP
        a(f"""v_bfe_u32 v{T+1}, v0, 2, 2                 ; r
        v_lshrrev_b32 v{T}, 4, v0
        v_lshl_add_u32 v{T}, v{T}, 3, v{T+1}              ; 8g + r
        v_lshlrev_b32 v{dst}, 8, v{T}
        v_bfe_u32 v{T}, v0, 1, 1                          ; c>>1
        v_lshlrev_b32 v{T+1}, 1, v{T+1}                   ; 2r""")
        if wave_term:
            a(f"s_lshl_b32 s{sT0}, s3, 2")
            a(f"v_add_u32 v{T}, s{sT0}, v{T}")
        a(f"""v_xor_b32 v{T}, v{T}, v{T+1}
        v_lshl_add_u32 v{dst}, v{T}, 4, v{dst}
        v_and_b32 v{T}, 1, v0
        v_lshl_add_u32 v{dst}, v{T}, 3, v{dst}""")
    def setup(self):
        self.cur = None
    def select(self, key, stride, rowcode):
        if self.cur == key: return
        a = self.a; T = self.TMP
        a(f"""v_lshrrev_b32 v{T}, 4, v0                  ; j
        v_mul_u32_u24 v{self.V4[1]}, {stride}, v{T}
        v_lshlrev_b32 v{T}, 1, v{T}
        v_and_b32 v{T+1}, 15, v0
        v_xor_b32 v{T}, v{T}, v{T+1}
        v_lshlrev_b32 v{T}, 4, v{T}
        v_add_u32 v{self.V4[0]}, v{self.V4[1]}, v{T}
        v_xor_b32 v{T}, 128, v{T}
        v_add_u32 v{self.V4[1]}, v{self.V4[1]}, v{T}
        v_lshrrev_b32 v{self.V1}, 1, v0
        v_mul_u32_u24 v{self.V1}, {stride}, v{self.V1}
        v_and_b32 v{T}, 1, v0
        v_lshl_add_u32 v{self.V1}, v{T}, 4, v{self.V1}""")
        a(rowcode)
        self.cur = key
    def dma_cu(self, tag, srd, stride, ks, lds):
        a, fl = self.a, self.opt.wflags
        a(f"s_mul_i32 s{sT1}, s3, {8 * stride}")
        a(f"s_add_u32 s{sT1}, s{sT1}, s{sROW}")
        for t in range(2):
            a(f"s_add_u32 m0, s{sW2K}, {lds + t * 1024}")
            a(f"s_add_u32 s{sT0}, s{sT1}, {(ks * 32 + 4 * t) * stride}")
            self.vm.issue(tag, f"buffer_load_dwordx4 v{self.V4[t]}, s[{srd}:{srd+3}], s{sT0} offen {fl} lds")
    def dma_wv(self, tag, srd, stride, ks, lds):
        a, fl = self.a, self.opt.wflags
        for t in range(8):
            a(f"s_add_u32 m0, s{sW9K}, {lds + t * 1024}")
            a(f"s_add_u32 s{sT0}, s{sROW}, {(ks * 32 + 4 * t) * stride}")
            self.vm.issue(tag, f"buffer_load_dwordx4 v{self.V4[t & 1]}, s[{srd}:{srd+3}], s{sT0} offen {fl} lds")
        a(f"s_add_u32 m0, s{sW9K}, {lds + 8192}")
        a(f"s_add_u32 s{sT0}, s{sROW}, {ks * 32 * stride + 256}")
        self.vm.issue(tag, f"buffer_load_dwordx4 v{self.V1}, s[{srd}:{srd+3}], s{sT0} offen {fl} lds")
    def dma_t8(self, srd, stride, ks, lds):
        a, fl = self.a, self.opt.wflags
        a(f"s_mov_b32 m0, {lds}")
        a(f"s_add_u32 s{sT0}, s{sROW}, {ks * 32 * stride + 256}")
        a(f"buffer_load_dwordx4 v{self.V1}, s[{srd}:{srd+3}], s{sT0} offen {fl} lds")
    def rd_cu(self, base_lds, imgs, dsts):
        a = self.a; VB = self.VB
        self.tr_lane_sw(VB[0], True)
        a(f"v_add_u32 v{VB[0]}, {base_lds}, v{VB[0]}")
        a(f"v_xor_b32 v{VB[1]}, 32, v{VB[0]}")
        a(f"v_xor_b32 v{VB[2]}, 128, v{VB[0]}")
        a(f"v_xor_b32 v{VB[3]}, 160, v{VB[0]}")
        n = 0
        for k, off in enumerate(imgs):
            for nt in range(2):
                for half in range(2):
                    a(f"ds_read_b64_tr_b16 {dsts(k, nt, half)}, v{VB[nt + 2 * half]} offset:{off + half * 1024}")
                    n += 1
                    if n % 12 == 0: a("s_waitcnt lgkmcnt(0)")
        a("s_waitcnt lgkmcnt(0)")
    def rd_wv(self, base_lds, ks):
        a = self.a; VB = self.VB
        self.tr_lane_sw(VB[0], False)
        a(f"s_add_u32 s{sT0}, s{sW9K}, {base_lds}")
        a(f"v_add_u32 v{VB[0]}, s{sT0}, v{VB[0]}")
        self.tr_lane(VB[1], 5)
        a(f"v_add_u32 v{VB[1]}, s{sT0}, v{VB[1]}")
        for nt in range(8):
            for half in range(2):
                t = VB[2 + half]
                a(f"v_xor_b32 v{t}, {nt * 32 ^ half * 128}, v{VB[0]}")
                a(f"ds_read_b64_tr_b16 {hs2(H_B[(ks, nt)], half)}, v{t} offset:{half * 1024}")
            if nt == 5: a("s_waitcnt lgkmcnt(0)")
        for half in range(2):
            a(f"ds_read_b64_tr_b16 {hs2(H_B[(ks, 8)], half)}, v{VB[1]} offset:{8192 + half * 128}")
        a("s_waitcnt lgkmcnt(0)")
    def select9(self, key, stride, rowcode):
        if self.cur == key: return
        a = self.a; T = self.TMP
        for j in range(3):
            d = self.V9[j]
            a(f"""s_lshl_b32 s{sT0}, s3, 6
            v_add_u32 v{T}, s{sT0}, v0
            v_add_u32 v{T}, {j * 256}, v{T}
            v_mul_u32_u24 v{d}, 3641, v{T}
            v_lshrrev_b32 v{d}, 16, v{d}
            v_mul_u32_u24 v{T+1}, 18, v{d}
            v_sub_u32 v{T}, v{T}, v{T+1}
            v_mul_u32_u24 v{d}, {stride}, v{d}
            v_lshl_add_u32 v{d}, v{T}, 4, v{d}""")
        a(rowcode)
        self.cur = key
    def dma9(self, tag, srd, off, lds):
        a, fl = self.a, self.opt.wflags
        a(f"s_add_u32 s{sT0}, s{sROW}, {off}")
        a(f"s_lshl_b32 s{sT1}, s3, 10")
        for j in range(2):
            a(f"s_add_u32 m0, s{sT1}, {lds + j * 4096}")
            self.vm.issue(tag, f"buffer_load_dwordx4 v{self.V9[j]}, s[{srd}:{srd+3}], s{sT0} offen {fl} lds")
        L = a.newlabel("Ld9")
        a("s_cmp_eq_u32 s3, 0")
        a(f"s_cbranch_scc0 {L}")
        a(f"s_mov_b32 m0, {lds + 8192}")
        a(f"buffer_load_dwordx4 v{self.V9[2]}, s[{srd}:{srd+3}], s{sT0} offen {fl} lds")
        a.label(L)
    def tr288(self, base_lds, wave_cols):
        a = self.a; T = self.TMP; VB = self.VB[0]
        a(f"""v_lshrrev_b32 v{T}, 4, v0
        v_bfe_u32 v{T+1}, v0, 2, 2
        v_lshl_add_u32 v{T}, v{T}, 3, v{T+1}
        v_mul_u32_u24 v{VB}, 288, v{T}
        v_and_b32 v{T}, 3, v0
        v_lshl_add_u32 v{VB}, v{T}, 3, v{VB}""")
        if wave_cols:
            a(f"s_lshl_b32 s{sT0}, s3, 6")
            a(f"s_add_u32 s{sT0}, s{sT0}, {base_lds}")
            a(f"v_add_u32 v{VB}, s{sT0}, v{VB}")
        else:
            a(f"v_add_u32 v{VB}, {base_lds}, v{VB}")
        return VB
    def convert_cu(self, home):
        a = self.a
        for ks0, n in ((0, 3), (3, 4)):
            self.rd_cu(home, [(ks0 + k) * 8192 for k in range(n)],
                       lambda k, nt, half: f"v[{VW + (k*2+nt)*4 + 2*half}:{VW + (k*2+nt)*4 + 2*half + 1}]")
            a("s_barrier")
            VB = self.VB[0]
            a(f"v_add_u32 v{VB}, {home}, v{VHB}")
            for k in range(n):
                for nt in range(2):
                    r = VW + (k * 2 + nt) * 4
                    a(f"ds_write_b128 v{VB}, v[{r}:{r+3}] offset:{(ks0 + k) * 8192 + nt * 1024}")
            a("s_waitcnt lgkmcnt(0)")
    def convert_t8(self, home, k0, n):
        a = self.a; VB, VC = self.VB[0], self.VB[1]
        self.tr_lane(VB, 5)
        a(f"v_add_u32 v{VB}, {home}, v{VB}")
        a(f"v_lshlrev_b32 v{VC}, 4, v0")
        a(f"v_add_u32 v{VC}, {home}, v{VC}")
        for k in range(n):
            for half in range(2):
                a(f"ds_read_b64_tr_b16 v[{VW + k*4 + 2*half}:{VW + k*4 + 2*half + 1}], v{VB} offset:{(k0 + k) * 1024 + half * 128}")
        a("s_waitcnt lgkmcnt(0)")
        for k in range(n):
            a(f"ds_write_b128 v{VC}, v[{VW + k*4}:{VW + k*4 + 3}] offset:{(k0 + k) * 1024}")
        a("s_waitcnt lgkmcnt(0)")

A0, A1 = VW, VW + 4
AT = [VW + 8 + 4 * k for k in range(4)]
WT = [VW + 24, VW + 28, VW + 32]
A2 = VW + 8

def gemv_order(nreg):
    R = list(range(nreg)); L = list(range(nreg, 18))
    seq = []
    while L:
        seq.append(R.pop(0)); seq.append(L.pop(0))
    return seq + R

TRA = VW + 20
def gemv_pre(a, lq, nreg, hreg):
    if nreg >= 18: return
    if hreg == VHD:
        a(f"v_mov_b32 v{TRA}, v{VHD}")
        a(f"v_xor_b32 v{TRA+1}, 32, v{VHD}")
        a(f"v_xor_b32 v{TRA+2}, 128, v{VHD}")
        a(f"v_xor_b32 v{TRA+3}, 160, v{VHD}")
    slots = [(ks, nt) for ks in range(nreg, 18) for nt in range(2)]
    for j in range(3): w_issue(a, lq, slots[j], j, nreg, hreg)
def w_issue(a, lq, sl, j, nreg, hreg):
    ks, nt = sl; t = WT[j % 3]
    if hreg == VHD:
        for half in range(2):
            lq.issue(("w", ks, nt), f"ds_read_b64_tr_b16 v[{t+2*half}:{t+2*half+1}], v{TRA + nt + 2*half} offset:{(ks - nreg)*8192 + half*1024}")
    else:
        lq.issue(("w", ks, nt), f"ds_read_b128 v[{t}:{t+3}], v{hreg} offset:{(ks - nreg)*8192 + nt*1024}")

def gemv18(a, lq, homes, nreg, hreg, act, tail=None):
    seq = gemv_order(nreg)
    slots = [(ks, nt) for ks in range(nreg, 18) for nt in range(2)]
    sj = {s: j for j, s in enumerate(slots)}
    nxt = 3
    NA = 3 if hreg == VHD else 4
    def act_issue(p):
        ks = seq[p]; t = AT[p % NA]
        lq.issue(("a", p), f"ds_read_b128 v[{t}:{t+3}], v{VACT} offset:{act - L_MISC + ks*64}")
    for p in range(NA - 1): act_issue(p)
    tail_done = tail is None
    for p, ks in enumerate(seq):
        if p + NA - 1 < 18: act_issue(p + NA - 1)
        lq.need(("a", p))
        At = f"v[{AT[p % NA]}:{AT[p % NA]+3}]"
        for nt, Ac in ((0, A0), (1, A1)):
            if ks >= nreg:
                lq.need(("w", ks, nt)); t = WT[sj[(ks, nt)] % 3]; B = f"v[{t}:{t+3}]"
            else:
                B = hs(homes[(ks, nt)])
            C = "0" if p == 0 else f"v[{Ac}:{Ac+3}]"
            a(f"v_mfma_f32_16x16x32_bf16 v[{Ac}:{Ac+3}], {At}, {B}, {C}")
            if ks >= nreg and nxt < len(slots):
                w_issue(a, lq, slots[nxt], nxt, nreg, hreg); nxt += 1
        if not tail_done and nxt >= len(slots) and (ks == 17 or (nreg >= 18 and p == 12)):
            tail(); tail_done = True
    if not tail_done: tail()

def gemv_opt(a, lq, act, home):
    L = a.newlabel("Lg3")
    a(f"s_cmp_eq_u32 s3, 3")
    a(f"s_cbranch_scc0 {L}")
    lq.drain()
    ATo = [AT[1], AT[2]]
    VH = AT[3]
    a(f"v_lshlrev_b32 v{VH}, 4, v0")
    a(f"v_add_u32 v{VH}, {home}, v{VH}")
    if home == H_D8:
        a(f"""v_lshrrev_b32 v{VH+1}, 4, v0
        v_bfe_u32 v{VH+2}, v0, 2, 2
        v_lshl_add_u32 v{VH+1}, v{VH+1}, 3, v{VH+2}
        v_lshlrev_b32 v{VH+1}, 5, v{VH+1}
        v_and_b32 v{VH+2}, 3, v0
        v_lshl_add_u32 v{VH+1}, v{VH+2}, 3, v{VH+1}
        v_add_u32 v{VH+1}, {home}, v{VH+1}""")
    def o_w(ks):
        t = WT[ks % 3]
        if home == H_D8 and ks >= NE_REG:
            for half in range(2):
                lq.issue(("o", ks), f"ds_read_b64_tr_b16 v[{t+2*half}:{t+2*half+1}], v{VH+1} offset:{ks*1024 + half*128}")
        else:
            lq.issue(("o", ks), f"ds_read_b128 v[{t}:{t+3}], v{VH} offset:{ks*1024}")
    def o_a(ks):
        t = ATo[ks % 2]
        lq.issue(("oa", ks), f"ds_read_b128 v[{t}:{t+3}], v{VACT} offset:{act - L_MISC + ks*64}")
    o_w(0); o_a(0); o_w(1); o_a(1); o_w(2)
    for ks in range(18):
        lq.need(("o", ks)); lq.need(("oa", ks))
        t = WT[ks % 3]; ta = ATo[ks % 2]
        C = "0" if ks == 0 else f"v[{A2}:{A2+3}]"
        a(f"v_mfma_f32_16x16x32_bf16 v[{A2}:{A2+3}], v[{ta}:{ta+3}], v[{t}:{t+3}], {C}")
        if ks + 2 < 18: o_a(ks + 2)
        if ks + 3 < 18: o_w(ks + 3)
    a.label(L)

def pack_pairs(a, src, dst, t1):
    a(f"v_mov_b32_dpp v{dst}, v{src} quad_perm:[0,0,2,2] row_mask:0xf bank_mask:0xf")
    a(f"v_mov_b32_dpp v{t1}, v{src} quad_perm:[1,1,3,3] row_mask:0xf bank_mask:0xf")
    a(f"v_cvt_pk_bf16_f32 v{dst}, v{dst}, v{t1}")

def gather_vec(a, opt, nreg):
    G = VW
    def loads():
        for k in range(8):
            a(f"s_add_u32 s{sT0}, s{nreg}, {k*2304}")
            a(f"buffer_load_dwordx4 v[{G+4*k}:{G+4*k+3}], v{VVEC}, s[{S_WS}:{S_WS+3}], s{sT0} offen sc1")
    def check():
        for c in range(4):
            a(f"v_add_f32 v{G+c}, v{G+c}, v{G+4+c}")
            a(f"v_add_f32 v{G+8+c}, v{G+8+c}, v{G+12+c}")
            a(f"v_add_f32 v{G+16+c}, v{G+16+c}, v{G+20+c}")
            a(f"v_add_f32 v{G+24+c}, v{G+24+c}, v{G+28+c}")
        for c in range(4):
            a(f"v_add_f32 v{G+c}, v{G+c}, v{G+8+c}")
            a(f"v_add_f32 v{G+16+c}, v{G+16+c}, v{G+24+c}")
        for c in range(4): a(f"v_add_f32 v{G+c}, v{G+c}, v{G+16+c}")
        a(f"v_add_f32 v{G+4}, v{G}, v{G+1}")
        a(f"v_add_f32 v{G+5}, v{G+2}, v{G+3}")
        a(f"v_cmp_u_f32 vcc, v{G+4}, v{G+5}")
    lanes_lt(a, 36)
    poll(a, opt, loads, check)
    for c in range(4): a(f"v_add_f32 v{VXR+c}, v{VXR+c}, v{G+c}")
    lanes_all(a)

def act_stats(a, act):
    S1, S2, T = VW, VW + 1, VW + 2
    a(f"v_mov_b32 v{S1}, 0")
    a(f"v_mov_b32 v{S2}, 0")
    a(f"v_lshrrev_b32 v{T+2}, 1, v{VVEC}")
    a(f"v_add_u32 v{T+2}, {act}, v{T+2}")
    lanes_lt(a, 36)
    a(f"""v_cvt_pk_bf16_f32 v{T}, v{VXR}, v{VXR+1}
    v_cvt_pk_bf16_f32 v{T+1}, v{VXR+2}, v{VXR+3}
    v_add_f32 v{S1}, v{VXR}, v{VXR+1}
    v_mul_f32 v{S2}, v{VXR}, v{VXR}
    ds_write_b64 v{T+2}, v[{T}:{T+1}]
    v_add_f32 v{T+3}, v{VXR+2}, v{VXR+3}
    v_fmac_f32 v{S2}, v{VXR+1}, v{VXR+1}
    v_add_f32 v{S1}, v{S1}, v{T+3}
    v_fmac_f32 v{S2}, v{VXR+2}, v{VXR+2}
    v_fmac_f32 v{S2}, v{VXR+3}, v{VXR+3}""")
    lanes_all(a)
    for sh in (8, 4, 2, 1):
        a(f"v_add_f32_dpp v{S1}, v{S1}, v{S1} row_ror:{sh} row_mask:0xf bank_mask:0xf")
        a(f"v_add_f32_dpp v{S2}, v{S2}, v{S2} row_ror:{sh} row_mask:0xf bank_mask:0xf")
    a(f"v_add_f32_dpp v{S1}, v{S1}, v{S1} row_bcast:15 row_mask:0xa bank_mask:0xf")
    a(f"v_add_f32_dpp v{S2}, v{S2}, v{S2} row_bcast:15 row_mask:0xa bank_mask:0xf")
    a(f"v_add_f32_dpp v{S1}, v{S1}, v{S1} row_bcast:31 row_mask:0xc bank_mask:0xf")
    a(f"v_add_f32_dpp v{S2}, v{S2}, v{S2} row_bcast:31 row_mask:0xc bank_mask:0xf")
    a(f"""v_lshrrev_b32 v{T}, 4, v0
    s_lshl_b32 s{sT0}, s3, 5
    s_add_u32 s{sT0}, s{sT0}, {L_ST}
    v_lshl_add_u32 v{T}, v{T}, 3, s{sT0}
    ds_write_b64 v{T}, v[{S1}:{S2}]""")

MU, RS = WT[0], WT[0] + 1
def stats_tail(a, lq):
    R = WT[1]
    a(f"v_mov_b32 v{WT[0]+2}, {L_ST}")
    for w in range(4):
        lq.issue(("st", w), f"ds_read_b64 v[{R+2*w}:{R+2*w+1}], v{WT[0]+2} offset:{w*32 + 24}")
    return R
def stats_fin(a, lq, R):
    lq.need(("st", 3))
    a(f"""v_add_f32 v{R}, v{R}, v{R+2}
    v_add_f32 v{R+1}, v{R+1}, v{R+3}
    v_add_f32 v{R+4}, v{R+4}, v{R+6}
    v_add_f32 v{R+5}, v{R+5}, v{R+7}
    v_add_f32 v{R}, v{R}, v{R+4}
    v_add_f32 v{R+1}, v{R+1}, v{R+5}
    v_mul_f32 v{MU}, {hex(f32(1.0/576))}, v{R}
    v_mul_f32 v{RS}, {hex(f32(1.0/576))}, v{R+1}
    v_fma_f32 v{RS}, -v{MU}, v{MU}, v{RS}
    v_max_f32 v{RS}, 0, v{RS}
    v_add_f32 v{RS}, {hex(f32(1e-5))}, v{RS}
    v_rsq_f32 v{RS}, v{RS}""")

def stage_B(a, opt, fm=lambda: None):
    G = VW; ST = VW + 16; T = VW + 18
    a(f"""s_lshl_b32 s{sT1}, s{sKQ}, 2
    s_add_u32 s{sT1}, s{sT1}, s3
    s_mul_i32 s{sT1}, s{sT1}, {8*A_REC}
    s_mul_i32 s{sT2}, s{sN}, {WS_A_CH}
    s_add_u32 s{sT1}, s{sT1}, s{sT2}""")
    VO, VS, VO3 = T, T + 1, T + 2
    a(f"""v_lshrrev_b32 v{VO}, 5, v0
    v_mul_u32_u24 v{VO}, {A_REC}, v{VO}
    v_and_b32 v{VS}, 31, v0
    v_lshlrev_b32 v{VO3}, 4, v{VS}
    v_add_u32 v{VO}, v{VO3}, v{VO}
    v_and_b32 v{VS}, 7, v0
    v_min_u32 v{VS}, 6, v{VS}
    v_mul_u32_u24 v{VS}, {A_REC}, v{VS}
    v_add_u32 v{VS}, 512, v{VS}""")
    M, Wt, Lw, F = T + 3, T + 4, T + 5, T + 6
    def loads():
        a(f"buffer_load_dwordx2 v[{ST}:{ST+1}], v{VS}, s[{S_WS}:{S_WS+3}], s{sT1} offen sc1")
        for k in range(3):
            a(f"buffer_load_dwordx4 v[{G+4*k}:{G+4*k+3}], v{VO}, s[{S_WS}:{S_WS+3}], s{sT1} offen offset:{2*k*A_REC} sc1")
        a(f"buffer_load_dwordx4 v[{G+12}:{G+15}], v{VO3}, s[{S_WS}:{S_WS+3}], s{sT1} offen offset:{6*A_REC} sc1")
    poll(a, opt, loads, lambda: sent_check(a, list(range(G, G + 16)) + [ST, ST + 1], M))
    fm()
    Lf = a.newlabel("Lflag")
    a(f"s_and_b32 s{sT0}, s{sN}, 1")
    a(f"s_or_b32 s{sT0}, s{sT0}, s{sI}")
    a(f"s_or_b32 s{sT0}, s{sT0}, s3")
    a(f"s_cmp_eq_u32 s{sT0}, 0")
    a(f"s_cbranch_scc0 {Lf}")
    a(f"v_mov_b32 v{M}, 1")
    a(f"s_lshl_b32 s{sT0}, s{sN}, 1")
    a(f"s_add_u32 s{sT0}, s{sT0}, {WS_FLAG}")
    a(f"v_mov_b32 v{Wt}, s{sT0}")
    a("s_mov_b64 exec, 1")
    a(f"buffer_store_dword v{M}, v{Wt}, s[{S_WS}:{S_WS+3}], 0 offen sc0 sc1")
    a("s_mov_b64 exec, -1")
    a.label(Lf)
    a(f"v_mov_b32 v{M}, v{ST}")
    for sh in (4, 2, 1):
        a(f"v_max_f32_dpp v{M}, v{M}, v{M} row_ror:{sh} row_mask:0xf bank_mask:0xf")
    a(f"""v_sub_f32 v{Wt}, v{ST}, v{M}
    v_exp_f32 v{Wt}, v{Wt}
    v_and_b32 v{Lw}, 7, v0
    v_cmp_eq_u32 vcc, 7, v{Lw}
    v_mov_b32 v{Lw}, 0
    v_cndmask_b32 v{Wt}, v{Wt}, v{Lw}, vcc
    v_mul_f32 v{Lw}, v{Wt}, v{ST+1}""")
    for sh in (4, 2, 1):
        a(f"v_add_f32_dpp v{Lw}, v{Lw}, v{Lw} row_ror:{sh} row_mask:0xf bank_mask:0xf")
    a(f"v_rcp_f32 v{Lw}, v{Lw}")
    a(f"v_mul_f32 v{Wt}, v{Wt}, v{Lw}")
    for s in range(7): a(f"v_readlane_b32 s{sRL+s}, v{Wt}, {s}")
    for k in range(4): a(f"v_mov_b32 v{F+k}, s{sRL+2*k}")
    for k in range(3):
        a(f"v_mov_b32 v{M}, s{sRL+2*k+1}")
        a(f"v_cndmask_b32 v{F+k}, v{F+k}, v{M}, s[{sHI}:{sHI+1}]")
    a(f"v_mov_b32 v{M}, 0")
    a(f"v_cndmask_b32 v{F+3}, v{F+3}, v{M}, s[{sHI}:{sHI+1}]")
    for c in range(4): a(f"v_mul_f32 v{G+c}, v{G+c}, v{F}")
    for k in range(1, 4):
        for c in range(4): a(f"v_fmac_f32 v{G+c}, v{G+4*k+c}, v{F+k}")
    for c in range(4): a(f"v_mov_b32 v{G+4+c}, v{G+c}")
    for c in range(4): a(f"v_permlane32_swap_b32 v{G+c}, v{G+4+c}")
    for c in range(4): a(f"v_add_f32 v{G+c}, v{G+c}, v{G+4+c}")
    a(f"v_cvt_pk_bf16_f32 v{G+8}, v{G}, v{G+1}")
    a(f"v_cvt_pk_bf16_f32 v{G+9}, v{G+2}, v{G+3}")
    a(f"""v_and_b32 v{M}, 31, v0
    s_lshl_b32 s{sT0}, s3, 8
    s_add_u32 s{sT0}, s{sT0}, {L_OACT}
    v_lshl_add_u32 v{M}, v{M}, 3, s{sT0}""")
    lanes_lt(a, 32)
    a(f"ds_write_b64 v{M}, v[{G+8}:{G+9}]")
    lanes_all(a)
    BT = VW
    a(f"s_sub_u32 s{sT0}, s{sT0}, {L_MISC}")
    a(f"v_add_u32 v{M}, s{sT0}, v{VACT}")
    a("s_waitcnt lgkmcnt(0)")
    for ks in range(4): a(f"ds_read_b128 v[{BT+4*ks}:{BT+4*ks+3}], v{M} offset:{ks*64}")
    fm()
    ACC = [VW + 16, VW + 20, VW + 24]
    OUT = VW + 28
    masks = [None, sG1, sG2, sG3]
    pend = []
    def fin(nt, ac):
        r, g = nt >> 2, nt & 3
        if g == 0: a(f"v_mov_b32 v{OUT+r}, v{ac}")
        else: a(f"v_cndmask_b32 v{OUT+r}, v{OUT+r}, v{ac}, s[{masks[g]}:{masks[g]+1}]")
    for grp in range(3):
        for ks in range(4):
            if grp == 0: a(f"s_waitcnt lgkmcnt({3-ks})")
            for j in range(3):
                nt = grp * 3 + j; ac = ACC[j]
                C = "0" if ks == 0 else f"v[{ac}:{ac+3}]"
                a(f"v_mfma_f32_16x16x32_bf16 v[{ac}:{ac+3}], v[{BT+4*ks}:{BT+4*ks+3}], {hs(H_B[(ks, nt)])}, {C}")
        for j in range(3): fin(grp * 3 + j, ACC[j])
    fm()
    a(f"""s_mul_i32 s{sT0}, s3, 576
    s_add_u32 s{sT0}, s{sT0}, {L_RED}
    v_lshl_add_u32 v{M}, v0, 2, s{sT0}
    ds_write_b32 v{M}, v{OUT}
    ds_write_b32 v{M}, v{OUT+1} offset:256""")
    lanes_lt(a, 16)
    a(f"ds_write_b32 v{M}, v{OUT+2} offset:512")
    lanes_all(a)
    a("s_waitcnt lgkmcnt(0)")
    a("s_barrier")
    L = a.newlabel("Lbp")
    a("s_cmp_eq_u32 s3, 0")
    a(f"s_cbranch_scc0 {L}")
    a(f"v_lshlrev_b32 v{M}, 4, v0")
    a(f"v_add_u32 v{M+1}, {L_RED}, v{M}")
    for w in range(4): a(f"ds_read_b128 v[{BT+4*w}:{BT+4*w+3}], v{M+1} offset:{w*576}")
    a(f"""s_mul_i32 s{sT0}, s{sN}, {WS_PV_CH}
    s_mul_i32 s{sT1}, s{sKQ}, 2304
    s_add_u32 s{sT0}, s{sT0}, s{sT1}
    s_mul_i32 s{sT1}, s{sNQ}, 576
    s_add_u32 s{sT0}, s{sT0}, s{sT1}
    s_add_u32 s{sT0}, s{sT0}, {WS_PB}""")
    a("s_waitcnt lgkmcnt(0)")
    for c in range(4):
        a(f"v_add_f32 v{BT+c}, v{BT+c}, v{BT+4+c}")
        a(f"v_add_f32 v{BT+8+c}, v{BT+8+c}, v{BT+12+c}")
    for c in range(4): a(f"v_add_f32 v{BT+c}, v{BT+c}, v{BT+8+c}")
    lanes_lt(a, 36)
    pub_flags(a, lambda fl: a(f"buffer_store_dwordx4 v[{BT}:{BT+3}], v{M}, s[{S_WS}:{S_WS+3}], s{sT0} offen {fl}"))
    lanes_all(a)
    a.label(L)

def load_x_lds(a, bcode):
    a(bcode)
    T = VW
    a(f"v_lshrrev_b32 v{T+2}, 1, v{VVEC}")
    a(f"s_add_u32 s{sT0}, s{sT0}, {L_XIN}")
    a(f"v_add_u32 v{T+2}, s{sT0}, v{T+2}")
    a(f"ds_read_b64 v[{T}:{T+1}], v{T+2}")
    a("s_waitcnt lgkmcnt(0)")
    a(f"""v_lshlrev_b32 v{VXR}, 16, v{T}
    v_and_b32 v{VXR+1}, 0xffff0000, v{T}
    v_lshlrev_b32 v{VXR+2}, 16, v{T+1}
    v_and_b32 v{VXR+3}, 0xffff0000, v{T+1}""")

def fill_ones(a, act):
    T = VW
    a(f"""v_mov_b32 v{T}, 0x3f803f80
    v_mov_b32 v{T+1}, 0x3f803f80
    v_lshrrev_b32 v{T+2}, 1, v{VVEC}
    v_add_u32 v{T+2}, {act}, v{T+2}""")
    lanes_lt(a, 36)
    a(f"ds_write_b64 v{T+2}, v[{T}:{T+1}]")
    lanes_all(a)
    a("s_waitcnt lgkmcnt(0)")

def select_tiles(a, dst, n3):
    a(f"v_mov_b32 v{dst}, v{A0}")
    a(f"v_cndmask_b32 v{dst}, v{dst}, v{A1}, s[{sG1}:{sG1+1}]")
    if n3: a(f"v_cndmask_b32 v{dst}, v{dst}, v{A2}, s[{sG2}:{sG2+1}]")

def chain(a, opt, st):
    a(f"""s_lshr_b32 s{sI}, s2, 3
    s_lshr_b32 s{sKQ}, s{sI}, 2
    s_and_b32 s{sNQ}, s{sI}, 3""")
    srd(a, S_WQ, P_WQ, 576*4096*2)
    srd(a, S_WO, P_WO, 4096*576*2)
    srd(a, S_W1, P_W1, 576*4608*2)
    srd(a, S_W2, P_W2, 4608*576*2)
    srd(a, S_X, P_X, 2304)
    srd(a, S_B1, P_B1, 9216)
    srd(a, S_B2, P_B2, 1152)
    srd(a, S_OUT, P_OUT, 2304)
    a(f"""s_mov_b32 s{sG1}, 0xffff0000
    s_mov_b32 s{sG1+1}, 0
    s_mov_b32 s{sG2}, 0
    s_mov_b32 s{sG2+1}, 0x0000ffff
    s_mov_b32 s{sG3}, 0
    s_mov_b32 s{sG3+1}, 0xffff0000
    s_mov_b32 s{sHI}, 0
    s_mov_b32 s{sHI+1}, -1
    s_lshl_b32 s{sW2K}, s3, 11
    s_mul_i32 s{sW9K}, s3, 9216""")
    if opt.stamps:
        for k in range(18): a(f"s_mov_b32 s{84+k}, 0")
    if opt.initmark:
        a("s_memrealtime s[82:83]")
        a("s_waitcnt lgkmcnt(0)")
        a("s_mov_b32 s101, s82")
    vm = VM(a)
    sg = Stager(a, opt, vm)
    T = VW
    a(f"""s_mul_i32 s{sT0}, s3, 576
    v_lshl_add_u32 v{VVEC}, v0, 4, s{sT0}        ; (144w+4l)*4
    v_lshrrev_b32 v{T}, 4, v0
    v_lshlrev_b32 v{VACT}, 4, v{T}
    v_add_u32 v{VACT}, {L_MISC}, v{VACT}
    v_lshl_add_u32 v{VHB}, v0, 4, s{sW2K}""")
    sg.tr_lane_sw(VHD, True)
    a(f"v_add_u32 v{VHD}, {H_DL}, v{VHD}")
    erow = f"s_lshl_b32 s{sROW}, s{sI}, 8"
    brow = f"""s_lshl_b32 s{sROW}, s{sKQ}, 2
    s_add_u32 s{sROW}, s{sROW}, s3
    s_mul_i32 s{sROW}, s{sROW}, {128*1152}
    s_mul_i32 s{sT0}, s{sNQ}, 288
    s_add_u32 s{sROW}, s{sROW}, s{sT0}"""
    crow = f"s_mul_i32 s{sROW}, s{sI}, 288"
    drow = f"""s_mul_i32 s{sROW}, s{sKQ}, {576*1152}
    s_mul_i32 s{sT0}, s{sNQ}, 288
    s_add_u32 s{sROW}, s{sROW}, s{sT0}"""
    MAT = {"E": (S_WQ, 8192, erow, H_E), "C": (S_W1, 9216, crow, H_C), "D": (S_W2, 1152, drow, H_D), "B": (S_WO, 1152, brow, H_B)}
    brow = f"""s_mul_i32 s{sROW}, s{sKQ}, {4*128*1152}
    s_mul_i32 s{sT0}, s{sNQ}, 288
    s_add_u32 s{sROW}, s{sROW}, s{sT0}"""
    MAT["B"] = (S_WO, 1152, brow, H_B)
    order = [("B", ks, w) for ks in range(4) for w in range(4)] + [("C", k, None) for k in range(18)] + [("D", k, None) for k in range(NE_REG)]
    SLOT = [56 * 1024 + k * 9216 for k in range(6)] + [112 * 1024, 121 * 1024, 130 * 1024, 139 * 1024]
    LAST = [10**6] * 6 + [33, 42, 15, 24]
    ring = {"next": 0, "slot_of": {}, "free": list(range(10))}
    def issue_images():
        while ring["next"] < len(order):
            j = ring["next"]
            cand = [sl for sl in ring["free"] if j <= LAST[sl]]
            if not cand: return
            sl = cand[-1] if LAST[cand[-1]] < 10**6 else cand[0]
            restricted = [c for c in cand if LAST[c] < 10**6]
            sl = restricted[0] if restricted else cand[0]
            ring["free"].remove(sl); ring["slot_of"][j] = sl
            (m, ks, w) = order[j]
            srd_, stride, rowc, _ = MAT[m]
            sg.select9(m, stride, rowc)
            off = (ks * 32 + (w * 128 if w is not None else 0)) * stride
            sg.dma9(("i", j), srd_, off, SLOT[sl])
            ring["next"] += 1
    def step(j):
        if j >= len(order): return
        vm.wait(("i", j))
        a("s_barrier")
        if j >= 1:
            ring["free"].append(ring["slot_of"][j - 1])
            issue_images()
        base = SLOT[ring["slot_of"][j]]
        (m, ks, w) = order[j]
        if m == "B":
            L = a.newlabel("Lcb")
            a(f"s_cmp_eq_u32 s3, {w}")
            a(f"s_cbranch_scc0 {L}")
            VB = sg.tr288(base, False)
            for nt in range(9):
                for half in range(2):
                    a(f"ds_read_b64_tr_b16 {hs2(H_B[(ks, nt)], half)}, v{VB} offset:{nt * 32 + half * 1152}")
                if nt == 5: a("s_waitcnt lgkmcnt(0)")
            a.label(L)
        else:
            VB = sg.tr288(base, True)
            H = MAT[m][3]
            for nt in range(2):
                for half in range(2):
                    a(f"ds_read_b64_tr_b16 {hs2(H[(ks, nt)], half)}, v{VB} offset:{nt * 32 + half * 1152}")
            L = a.newlabel("Lc8")
            a("s_cmp_eq_u32 s3, 3")
            a(f"s_cbranch_scc0 {L}")
            for half in range(2):
                a(f"ds_read_b64_tr_b16 v[{VW + 2*half}:{VW + 2*half + 1}], v{VB} offset:{64 + half * 1152}")
            a(f"v_lshlrev_b32 v{VW+4}, 4, v0")
            a(f"v_add_u32 v{VW+4}, {(H_C8 if m == 'C' else H_D8) + ks * 1024}, v{VW+4}")
            a("s_waitcnt lgkmcnt(0)")
            a(f"ds_write_b128 v{VW+4}, v[{VW}:{VW+3}]")
            a.label(L)
        a("s_waitcnt lgkmcnt(0)")
        if opt.initmark == 2 and j % 3 == 2 and j // 3 < 14:
            a("s_memrealtime s[82:83]"); a("s_waitcnt lgkmcnt(0)"); a(f"s_mov_b32 s{86+j//3}, s82")
    a(f"""v_mov_b32 v{T+4}, -1
    v_mov_b32 v{T+5}, -1
    v_mov_b32 v{T+6}, -1
    v_mov_b32 v{T+7}, -1
    v_lshlrev_b32 v{T+3}, 4, v0
    s_lshl_b32 s{sT0}, s3, 13
    s_lshl_b32 s{sT1}, s{sI}, 8
    s_add_u32 s{sT0}, s{sT0}, s{sT1}
    s_add_u32 s{sT0}, s{sT0}, {WS_Q}""")
    lanes_lt(a, 16)
    vm.issue("arm", f"buffer_store_dwordx4 v[{T+4}:{T+7}], v{T+3}, s[{S_WS}:{S_WS+3}], s{sT0} offen sc0 sc1")
    a(f"""s_mul_i32 s{sT0}, s3, {WS_PV_CH}
    s_mul_i32 s{sT1}, s{sKQ}, 2304
    s_add_u32 s{sT0}, s{sT0}, s{sT1}
    s_mul_i32 s{sT1}, s{sNQ}, 576
    s_add_u32 s{sT0}, s{sT0}, s{sT1}
    s_add_u32 s{sT1}, s{sT0}, {WS_PD}
    s_add_u32 s{sT0}, s{sT0}, {WS_PB}""")
    lanes_lt(a, 36)
    vm.issue("arm", f"buffer_store_dwordx4 v[{T+4}:{T+7}], v{T+3}, s[{S_WS}:{S_WS+3}], s{sT0} offen sc0 sc1")
    vm.issue("arm", f"buffer_store_dwordx4 v[{T+4}:{T+7}], v{T+3}, s[{S_WS}:{S_WS+3}], s{sT1} offen sc0 sc1")
    a(f"v_lshrrev_b32 v{T+8}, 1, v{VVEC}")
    vm.issue("small", f"buffer_load_dwordx2 v[{T+10}:{T+11}], v{T+8}, s[{S_X}:{S_X+3}], 0 offen")
    vm.issue("small", f"buffer_load_dwordx2 v[{T+12}:{T+13}], v{T+8}, s[{S_X}:{S_X+3}], 0 offen offset:1152")
    a(f"""s_mul_i32 s{sT0}, s3, {WS_H_CH}
    s_mul_i32 s{sT1}, s{sI}, 288
    s_add_u32 s{sT0}, s{sT0}, s{sT1}
    s_add_u32 s{sT0}, s{sT0}, {WS_H}""")
    lanes_lt(a, 18)
    vm.issue("arm", f"buffer_store_dwordx4 v[{T+4}:{T+7}], v{T+3}, s[{S_WS}:{S_WS+3}], s{sT0} offen sc0 sc1")
    a(f"s_lshl_b32 s{sT0}, s{sI}, 7")
    a(f"s_add_u32 s{sT0}, s{sT0}, {WS_FLAG}")
    lanes_lt(a, 1)
    vm.issue("arm", f"buffer_store_dwordx4 v[{T+4}:{T+7}], v{T+3}, s[{S_WS}:{S_WS+3}], s{sT0} offen sc0 sc1")
    lanes_all(a)
    a(f"""s_mul_i32 s{sT0}, s{sI}, 288
    s_lshl_b32 s{sT1}, s3, 6
    s_add_u32 s{sT0}, s{sT0}, s{sT1}
    v_lshlrev_b32 v{T+9}, 1, v0""")
    vm.issue("small", f"buffer_load_ushort v{VBB}, v{T+9}, s[{S_B1}:{S_B1+3}], s{sT0} offen")
    a(f"""s_mul_i32 s{sT0}, s{sNQ}, 288
    s_add_u32 s{sT0}, s{sT0}, s{sT1}""")
    vm.issue("small", f"buffer_load_ushort v{T+14}, v{T+9}, s[{S_B2}:{S_B2+3}], s{sT0} offen")
    sg.select("E", 8192, erow)
    for ks in range(NE_REG):
        sg.dma_cu("ereg", S_WQ, 8192, ks, 56 * 1024 + ks * 8192)
    for ks in range(NE_REG, 18):
        sg.dma_cu("ehome", S_WQ, 8192, ks, H_EL + (ks - NE_REG) * 8192)
    vm.wait("small")
    a(f"""v_lshlrev_b32 v{VBB}, 16, v{VBB}
    v_mov_b32 v{T+9}, 0
    s_cmp_eq_u32 s{sKQ}, 0
    s_cselect_b64 vcc, -1, 0
    v_cndmask_b32 v{T+14}, v{T+9}, v{T+14}, vcc
    v_or_b32 v{VBB}, v{VBB}, v{T+14}
    v_add_u32 v{T+8}, {L_XIN}, v{T+8}""")
    lanes_lt(a, 36)
    a(f"ds_write_b64 v{T+8}, v[{T+10}:{T+11}]")
    a(f"ds_write_b64 v{T+8}, v[{T+12}:{T+13}] offset:1152")
    lanes_all(a)
    fill_ones(a, L_ACTA)
    a("s_barrier")
    L = a.newlabel("Lci")
    a("s_cmp_eq_u32 s3, 0")
    a(f"s_cbranch_scc0 {L}")
    a(f"""s_getreg_b32 s{sT0}, hwreg(HW_REG_XCC_ID)
    s_and_b32 s{sT0}, s{sT0}, 7
    s_lshl_b32 s{sT0}, s{sT0}, 3
    s_lshl_b64 s[{sRL}:{sRL+1}], 1, s{sT0}
    v_mov_b32 v{T}, s{sRL}
    v_mov_b32 v{T+1}, s{sRL+1}
    v_mov_b32 v{T+2}, 128
    s_mov_b64 exec, 1
    buffer_atomic_add_x2 v[{T}:{T+1}], v{T+2}, s[{S_DBG}:{S_DBG+3}], 0 offen sc1
    s_mov_b64 exec, -1""")
    a.label(L)
    vm.wait("ereg")
    a("s_barrier")
    for k0, n in ((0, 6), (6, 5)):
        sg.rd_cu(56 * 1024 + k0 * 8192, [k * 8192 for k in range(n)], lambda k, nt, half, k0=k0: hs2(H_E[(k0 + k, nt)], half))
    a("s_barrier")
    sg.setup()
    issue_images()
    vm.wait("ehome")
    a("s_barrier")
    sg.convert_cu(H_EL)
    a("s_barrier")
    sg.setup()
    for j in range(0, 4): step(j)
    lq = LQ(a)
    gemv_pre(a, lq, NE_REG, VHB)
    gemv18(a, lq, H_E, NE_REG, VHB, L_ACTA)
    select_tiles(a, VCSE, False)
    if opt.stamps != 3: st.mark()
    sg.setup()
    for j in range(4, 8): step(j)
    a(f"s_mov_b32 s{sIT}, 0")
    a("s_barrier")
    a("s_branch L_q1")
    a.label("L_citer")
    a(f"s_sub_u32 s{sN}, s{sIT}, 2")
    Lx = a.newlabel("Lx")
    a(f"s_bitcmp1_b32 s{sN}, 0")
    a(f"s_cbranch_scc1 {Lx}")
    load_x_lds(a, f"s_mul_i32 s{sT0}, s{sN}, 576")
    a.label(Lx)
    fine = opt.stamps == 3
    fm = (lambda: st.mark_if(sN, 2)) if fine else (lambda: None)
    if fine:
        class _N:
            def mark(self, *x): fm()
        stc = _N()
    else: stc = st
    stage_B(a, opt, fm)
    stc.mark(sN, 4)
    a(f"""s_mul_i32 s{sT2}, s{sN}, {WS_PV_CH}
    s_add_u32 s{sT2}, s{sT2}, {WS_PB}""")
    gather_vec(a, opt, sT2)
    fm()
    act_stats(a, L_ACTA)
    a("s_waitcnt lgkmcnt(0)")
    a("s_barrier")
    fm()
    lq = LQ(a)
    R = [None]
    def tl(): R[0] = stats_tail(a, lq)
    gemv18(a, lq, H_C, 18, None, L_ACTA, tail=tl)
    stats_fin(a, lq, R[0])
    a(f"v_readfirstlane_b32 s{sRL}, v{MU}")
    a(f"v_readfirstlane_b32 s{sRL+1}, v{RS}")
    gemv_opt(a, lq, L_ACTA, H_C8)
    fm()
    Hv, H2, H3 = AT[1], AT[1] + 1, AT[1] + 2
    select_tiles(a, Hv, True)
    k1 = -2.0 * math.sqrt(2.0 / math.pi) * math.log2(math.e)
    a(f"""v_mul_f32 v{H2}, s{sRL}, v{VCSC}
    v_and_b32 v{H3}, 0xffff0000, v{VBB}
    v_sub_f32 v{Hv}, v{Hv}, v{H2}
    v_fma_f32 v{Hv}, v{Hv}, s{sRL+1}, v{H3}
    v_mul_f32 v{H2}, v{Hv}, v{Hv}
    v_mov_b32 v{H3}, {hex(f32(k1))}
    v_mov_b32 v{H3+1}, {hex(f32(k1*0.044715))}
    v_fma_f32 v{H2}, v{H2}, v{H3+1}, v{H3}
    v_mul_f32 v{H2}, v{H2}, v{Hv}
    v_exp_f32 v{H2}, v{H2}
    v_add_f32 v{H2}, 1.0, v{H2}
    v_rcp_f32 v{H2}, v{H2}
    v_mul_f32 v{Hv}, v{Hv}, v{H2}""")
    pack_pairs(a, Hv, H2, H3)
    a(f"""s_mul_i32 s{sT0}, s{sN}, {WS_H_CH}
    s_mul_i32 s{sT1}, s{sI}, 288
    s_add_u32 s{sT0}, s{sT0}, s{sT1}
    s_lshl_b32 s{sT1}, s3, 6
    s_add_u32 s{sT0}, s{sT0}, s{sT1}
    s_add_u32 s{sT0}, s{sT0}, {WS_H}
    v_lshlrev_b32 v{H3}, 1, v0
    s_mov_b32 exec_lo, 0x55555555
    s_cmp_eq_u32 s3, 3
    s_cselect_b32 exec_hi, 0x5555, 0""")
    pub_flags(a, lambda fl: a(f"buffer_store_dword v{H2}, v{H3}, s[{S_WS}:{S_WS+3}], s{sT0} offen {fl}"))
    lanes_all(a)
    stc.mark(sN, 4)
    G = VW
    a(f"""s_mul_i32 s{sT1}, s{sN}, {WS_H_CH}
    s_mul_i32 s{sT0}, s{sKQ}, 1152
    s_add_u32 s{sT1}, s{sT1}, s{sT0}
    s_mul_i32 s{sT0}, s3, 288
    s_add_u32 s{sT1}, s{sT1}, s{sT0}
    s_add_u32 s{sT1}, s{sT1}, {WS_H}
    v_lshlrev_b32 v{G+5}, 4, v0
    s_add_u32 s{sT0}, s{sT0}, {L_ACTB}
    v_add_u32 v{G+6}, s{sT0}, v{G+5}""")
    lq = LQ(a)
    gemv_pre(a, lq, NE_REG, VHD)
    lanes_lt(a, 18)
    poll(a, opt, lambda: a(f"buffer_load_dwordx4 v[{G}:{G+3}], v{G+5}, s[{S_WS}:{S_WS+3}], s{sT1} offen sc1"),
         lambda: sent_check(a, range(G, G + 4), G + 4))
    a(f"ds_write_b128 v{G+6}, v[{G}:{G+3}]")
    lanes_all(a)
    fm()
    lq.drain(); a("s_waitcnt lgkmcnt(0)")
    a("s_barrier")
    gemv18(a, lq, H_D, NE_REG, VHD, L_ACTB)
    gemv_opt(a, lq, L_ACTB, H_D8)
    fm()
    select_tiles(a, Hv, True)
    a(f"v_lshlrev_b32 v{H2}, 16, v{VBB}")
    a(f"v_add_f32 v{Hv}, v{Hv}, v{H2}")
    a(f"""s_mul_i32 s{sT0}, s{sN}, {WS_PV_CH}
    s_mul_i32 s{sT1}, s{sKQ}, 2304
    s_add_u32 s{sT0}, s{sT0}, s{sT1}
    s_mul_i32 s{sT1}, s{sNQ}, 576
    s_add_u32 s{sT0}, s{sT0}, s{sT1}
    s_lshl_b32 s{sT1}, s3, 7
    s_add_u32 s{sT0}, s{sT0}, s{sT1}
    s_add_u32 s{sT0}, s{sT0}, {WS_PD}
    v_lshlrev_b32 v{H3}, 2, v0
    s_mov_b32 exec_lo, -1
    s_cmp_eq_u32 s3, 3
    s_cselect_b32 exec_hi, 0xffff, 0""")
    pub_flags(a, lambda fl: a(f"buffer_store_dword v{Hv}, v{H3}, s[{S_WS}:{S_WS+3}], s{sT0} offen {fl}"))
    lanes_all(a)
    stc.mark(sN, 4)
    a(f"""s_mul_i32 s{sT2}, s{sN}, {WS_PV_CH}
    s_add_u32 s{sT2}, s{sT2}, {WS_PD}""")
    gather_vec(a, opt, sT2)
    fm()
    Lodd = a.newlabel("Lodd")
    a(f"s_bitcmp1_b32 s{sN}, 0")
    a(f"s_cbranch_scc1 {Lodd}")
    a(f"s_lshr_b32 s{sT2}, s{sN}, 1")
    a(f"s_add_u32 s{sQI}, s{sT2}, 2")
    a("s_branch L_E")
    a.label("L_q1")
    load_x_lds(a, f"s_mul_i32 s{sT0}, s{sIT}, 1152")
    a(f"s_mov_b32 s{sQI}, s{sIT}")
    a.label("L_E")
    act_stats(a, L_ACTA)
    lq = LQ(a)
    gemv_pre(a, lq, NE_REG, VHB)
    lq.drain(); a("s_waitcnt lgkmcnt(0)")
    a("s_barrier")
    def tl2(): R[0] = stats_tail(a, lq)
    if fine: st.mark_if(sIT, 4)
    gemv18(a, lq, H_E, NE_REG, VHB, L_ACTA, tail=tl2)
    stats_fin(a, lq, R[0])
    if fine: st.mark_if(sIT, 4)
    select_tiles(a, Hv, False)
    a(f"""v_mul_f32 v{H2}, v{MU}, v{VCSE}
    v_sub_f32 v{Hv}, v{Hv}, v{H2}
    v_mul_f32 v{Hv}, v{Hv}, v{RS}""")
    pack_pairs(a, Hv, H2, H3)
    a(f"""s_lshl_b32 s{sT0}, s{sQI}, 13
    s_lshl_b32 s{sT1}, s{sI}, 8
    s_add_u32 s{sT0}, s{sT0}, s{sT1}
    s_lshl_b32 s{sT1}, s3, 6
    s_add_u32 s{sT0}, s{sT0}, s{sT1}
    s_add_u32 s{sT0}, s{sT0}, {WS_Q}
    v_lshlrev_b32 v{H3}, 1, v0
    s_mov_b32 exec_lo, 0x55555555
    s_mov_b32 exec_hi, 0
    buffer_store_dword v{H2}, v{H3}, s[{S_WS}:{S_WS+3}], s{sT0} offen sc0 sc1""")
    lanes_all(a)
    if fine: st.mark_if(sIT, 4)
    elif opt.initmark != 2: st.mark(sIT, 5)
    a(f"s_add_u32 s{sIT}, s{sIT}, 1")
    a(f"s_cmp_eq_u32 s{sIT}, 1")
    Lq = a.newlabel("Lq1b")
    a(f"s_cbranch_scc0 {Lq}")
    sg.setup()
    for j in range(8, 12): step(j)
    a("s_branch L_q1")
    a.label(Lq)
    a(f"s_cmp_eq_u32 s{sIT}, 2")
    a(f"s_cbranch_scc0 L_citer")
    sg.setup()
    for j in range(12, len(order)): step(j)
    a("s_barrier")
    sg.setup()
    a(f"v_mov_b32 v{T+3}, 128")
    a(f"v_mov_b32 v{T+7}, 0")
    vm.issue("cnt", f"buffer_load_dwordx2 v[{T+4}:{T+5}], v{T+3}, s[{S_DBG}:{S_DBG+3}], 0 offen sc1")
    vm.issue("cnt", f"buffer_load_dword v{T+6}, v{T+7}, s[{S_DBG}:{S_DBG+3}], 0 offen sc1")
    sg.select("D", 1152, drow)
    for ks in range(NE_REG, 18):
        sg.dma_cu("dhome", S_W2, 1152, ks, H_DL + (ks - NE_REG) * 8192)
    L3 = a.newlabel("Lo3")
    a(f"s_cmp_eq_u32 s3, 3")
    a(f"s_cbranch_scc0 {L3}")
    for ks in range(NE_REG, 18): sg.dma_t8(S_W2, 1152, ks, H_D8 + ks * 1024)
    a.label(L3)
    vm.wait("cnt")
    Lsp, Lok = a.newlabel("Lcs"), a.newlabel("Lco")
    a(f"s_mov_b32 s{sCN}, 0")
    a.label(Lsp)
    a(f"""v_sad_u8 v{T+8}, v{T+4}, 0, 0
    v_sad_u8 v{T+8}, v{T+5}, 0, v{T+8}
    v_readfirstlane_b32 s{sT0}, v{T+8}
    v_readfirstlane_b32 s{sT1}, v{T+6}
    s_cmp_ge_u32 s{sT0}, 32
    s_cselect_b32 s{sT0}, 1, 0
    s_cmp_ge_u32 s{sT1}, 224
    s_cselect_b32 s{sT0}, s{sT0}, 0
    s_cmp_eq_u32 s{sT0}, 1
    s_cbranch_scc1 {Lok}
    buffer_load_dwordx2 v[{T+4}:{T+5}], v{T+3}, s[{S_DBG}:{S_DBG+3}], 0 offen sc1
    buffer_load_dword v{T+6}, v{T+7}, s[{S_DBG}:{S_DBG+3}], 0 offen sc1
    s_waitcnt vmcnt(0)
    s_add_u32 s{sCN}, s{sCN}, 1
    s_cmp_lt_u32 s{sCN}, {opt.spin}
    s_cbranch_scc1 {Lsp}""")
    a.label(Lok)
    a(f"""v_readfirstlane_b32 s{sT0}, v{T+4}
    v_readfirstlane_b32 s{sT1}, v{T+5}
    s_or_b32 s{sT2}, s{sT0}, s{sT1}
    s_mov_b32 s{sFAST}, 0""")
    for sh in (0, 8, 16, 24):
        a(f"s_cmp_eq_u32 s{sT2}, {hex(32 << sh)}")
        a(f"s_cselect_b32 s{sFAST}, 1, s{sFAST}")
    a(f"s_min_u32 s{sT0}, s{sT0}, s{sT1}")
    a(f"s_cmp_eq_u32 s{sT0}, 0")
    a(f"s_cselect_b32 s{sFAST}, s{sFAST}, 0")
    if opt.safe: a(f"s_mov_b32 s{sFAST}, 0")
    fill_ones(a, L_ACTA)
    a("s_barrier")
    lq = LQ(a)
    gemv18(a, lq, H_C, 18, None, L_ACTA)
    gemv_opt(a, lq, L_ACTA, H_C8)
    select_tiles(a, VCSC, True)
    if opt.initmark:
        st.n = 1
        st.mark()
        st.dump(VW)
        a("s_branch L_exit")
    a("s_branch L_citer")
    a.label(Lodd)
    Lno = a.newlabel("Lno")
    a(f"s_cmp_eq_u32 s{sI}, 0")
    a(f"s_cbranch_scc0 {Lno}")
    a(f"v_cvt_pk_bf16_f32 v{VW}, v{VXR}, v{VXR+1}")
    a(f"v_cvt_pk_bf16_f32 v{VW+1}, v{VXR+2}, v{VXR+3}")
    a(f"v_lshrrev_b32 v{VW+2}, 1, v{VVEC}")
    a(f"s_lshr_b32 s{sT0}, s{sN}, 1")
    a(f"s_mul_i32 s{sT0}, s{sT0}, 1152")
    lanes_lt(a, 36)
    a(f"buffer_store_dwordx2 v[{VW}:{VW+1}], v{VW+2}, s[{S_OUT}:{S_OUT+3}], s{sT0} offen")
    lanes_all(a)
    a.label(Lno)
    a(f"s_add_u32 s{sIT}, s{sIT}, 1")
    a(f"s_cmp_lt_u32 s{sIT}, 6")
    a("s_cbranch_scc1 L_citer")
    st.dump(VW, [(0, 11, False), (1, 3, False), (15, 4, False), (3, 6, False), (17, 7, False), (4, 9, False), (12, 10, False), (13, 12, False)])
```

```python
import re
NAME = "interleave_layers__mha_block_cached__dense_activation_gelu__decode"

REG_RE = re.compile(r'^(-|abs\()?([vas])(?:(\d+)|\[(\d+):(\d+)\])\)?$')
def regs_of(tok):
    tok = tok.strip()
    if tok in ("vcc",): return {("s", 106), ("s", 107)}
    if tok == "vcc_lo": return {("s", 106)}
    if tok == "vcc_hi": return {("s", 107)}
    if tok == "exec": return {("s", 126), ("s", 127)}
    if tok == "exec_lo": return {("s", 126)}
    if tok == "exec_hi": return {("s", 127)}
    if tok == "m0": return {("s", 124)}
    t = tok
    if t.startswith("-"): t = t[1:]
    if t.startswith("abs(") and t.endswith(")"): t = t[4:-1]
    if t.startswith("|") and t.endswith("|"): t = t[1:-1]
    m = re.match(r'^([vas])(?:(\d+)|\[(\d+):(\d+)\])$', t)
    if not m: return set()
    k = m.group(1)
    if m.group(2) is not None: return {(k, int(m.group(2)))}
    return {(k, i) for i in range(int(m.group(3)), int(m.group(4)) + 1)}

TRANS = ("v_exp_f32", "v_log_f32", "v_rcp_f32", "v_rsq_f32", "v_sqrt_f32", "v_sin_f32", "v_cos_f32", "v_rcp_iflag_f32")
def split_ops(rest):
    ops, depth, cur = [], 0, ""
    for ch in rest:
        if ch in "[(": depth += 1
        if ch in "])": depth -= 1
        if ch == "," and depth == 0: ops.append(cur.strip()); cur = ""
        else: cur += ch
    if cur.strip(): ops.append(cur.strip())
    return ops

class Ins:
    pass

def parse(line):
    s = line.split(";")[0].strip()
    i = Ins(); i.text = line; i.cls = "other"; i.w = set(); i.r = set(); i.mn = ""
    i.dpp = False; i.ws = 1; i.passes = 0; i.srcc = set(); i.ab = set(); i.widestore = set(); i.lds_dma = False
    if not s or s.endswith(":") or s.startswith("."):
        i.cls = "label" if s.endswith(":") else "none"; i.ws = 0
        return i
    parts = s.split(None, 1)
    mn = parts[0]; rest = parts[1] if len(parts) > 1 else ""
    base = re.sub(r'_(e32|e64|dpp|sdwa)$', '', mn)
    i.mn = base
    ops = split_ops(rest)
    mods = ""
    if ops:
        p = ops[-1].split(None, 1)
        ops[-1] = p[0]
        mods = p[1] if len(p) > 1 else ""
    i.mods = mods
    R = [regs_of(o) for o in ops]
    if base == "s_nop":
        i.cls = "nop"; i.ws = int(ops[0], 0) + 1; return i
    if base.startswith("s_cbranch") or base in ("s_branch", "s_setpc_b64", "s_swappc_b64", "s_endpgm", "s_call_b64"):
        i.cls = "branch"
        if base == "s_swappc_b64": i.w = R[0]; i.r = R[1]
        if base == "s_setpc_b64": i.r = R[0]
        return i
    if base.startswith("v_mfma"):
        i.cls = "mfma"; i.w = R[0]; i.ab = R[1] | R[2]; i.srcc = R[3]; i.r = i.ab | i.srcc
        i.passes = 8 if "32x32" in base else 4
        assert "bf16" in base or "f16" in base, base
        return i
    if base.startswith("v_"):
        i.cls = "valu"
        i.dpp = ("row_" in mods or "quad_perm" in mods or "wave_" in mods or mn.endswith("_dpp"))
        i.trans = base in TRANS
        if base.startswith("v_cmp"):
            i.w = R[0]; i.r = set().union(*R[1:])
            if base.startswith("v_cmpx"): i.w |= {("s",126),("s",127)}
        elif base in ("v_readfirstlane_b32", "v_readlane_b32"):
            i.w = R[0]; i.r = set().union(*R[1:]); i.cls = "valu"; i.readlane = True
        elif base in ("v_add_co_u32", "v_sub_co_u32", "v_subrev_co_u32"):
            i.w = R[0] | R[1]; i.r = set().union(*R[2:])
        elif base in ("v_addc_co_u32", "v_subb_co_u32"):
            i.w = R[0] | R[1]; i.r = set().union(*R[2:])
        elif base in ("v_permlane16_swap_b32", "v_permlane32_swap_b32"):
            i.w = R[0] | R[1]; i.r = R[0] | R[1]; i.permlane = True
        elif base in ("v_fmac_f32", "v_dot2c_f32_bf16", "v_pk_fmac_f16", "v_writelane_b32"):
            i.w = R[0]; i.r = set().union(*R)
        elif base == "v_cndmask_b32" and len(ops) == 3:
            i.w = R[0]; i.r = R[1] | R[2] | regs_of("vcc")
        elif base == "v_nop":
            pass
        else:
            i.w = R[0]; i.r = set().union(*R[1:]) if len(R) > 1 else set()
            if i.dpp: i.r |= R[0]
        if base == "v_cndmask_b32" and len(ops) == 4: pass
        return i
    if base.startswith(("global_", "buffer_", "flat_", "scratch_")):
        i.cls = "vmem"
        i.lds_dma = (" lds" in (" " + mods)) or "_lds_" in base
        if base in ("buffer_inv", "buffer_wbl2"): return i
        if "load" in base and not i.lds_dma:
            i.w = R[0]; i.r = set().union(*R[1:])
        elif "atomic" in base and "sc0" in mods:
            i.w = R[0]; i.r = set().union(*R[1:])
        else:
            i.r = set().union(*R)
            if "store" in base and ("x4" in base or "x3" in base):
                i.widestore = R[1] if base.startswith("global_") else R[0]
        if i.lds_dma: i.r |= regs_of("m0")
        return i
    if base.startswith("ds_"):
        i.cls = "ds"
        if base.startswith(("ds_read", "ds_bpermute", "ds_permute", "ds_swizzle")) or "_rtn" in base:
            i.w = R[0]; i.r = set().union(*R[1:])
        else:
            i.r = set().union(*R)
        return i
    if base.startswith("s_"):
        if base.startswith(("s_load", "s_buffer_load", "s_memtime", "s_memrealtime")):
            i.cls = "smem"; i.w = R[0]; i.r = set().union(*R[1:]) if len(R) > 1 else set()
            return i
        i.cls = "salu"
        if base.startswith("s_cmp") or base in ("s_waitcnt", "s_barrier", "s_sleep", "s_setprio", "s_bitcmp1_b32", "s_bitcmp0_b32", "s_sethalt"):
            i.r = set().union(*R) if R else set()
        else:
            i.w = R[0] if R else set(); i.r = set().union(*R[1:]) if len(R) > 1 else set()
            if "saveexec" in base: i.w |= regs_of("exec"); i.r |= regs_of("exec")
        return i
    raise ValueError("unparsed: " + line)

def isv(x): return x[0] in "va"

def hazard_pass(lines):
    out = []
    hist = []
    def need(cons):
        n = 0
        for (p, age) in hist:
            req = 0
            if p.cls == "valu":
                vw = {x for x in p.w if isv(x)}; sw = {x for x in p.w if not isv(x)}
                if cons.cls == "valu":
                    if getattr(cons, "readlane", False) and vw & cons.r: req = max(req, 1)
                    if sw & cons.r: req = max(req, 4 if cons.mn in ("v_readlane_b32", "v_writelane_b32") else 2)
                    if cons.dpp and vw & cons.r: req = max(req, 2)
                    if cons.dpp and sw & regs_of("exec"): req = max(req, 5)
                    if getattr(p, "trans", False) and vw & cons.r: req = max(req, 1)
                    if getattr(cons, "permlane", False) and vw & cons.r: req = max(req, 2)
                    if p.mn.startswith("v_cmpx"): req = max(req, 4)
                if cons.cls == "mfma":
                    if vw & cons.r: req = max(req, 2)
                    if sw & regs_of("exec"): req = max(req, 4)
                if cons.cls == "vmem" and sw & cons.r: req = max(req, 5)
                if cons.cls in ("salu", "smem", "branch") and sw & cons.r: req = max(req, 1)
                if cons.cls == "branch" and sw & regs_of("vcc") and "vcc" in cons.mn: req = max(req, 1)
            if p.cls == "mfma":
                big = p.passes == 8
                if cons.cls == "mfma":
                    if p.w & cons.ab: req = max(req, 12 if big else 8)
                    if p.w & cons.srcc and not (p.w == cons.srcc and p.passes == cons.passes): req = max(req, 10 if big else 6)
                    if p.w & cons.w and not (p.w == cons.w and p.w == cons.srcc):
                        if not (p.w == cons.srcc): req = max(req, 12 if big else 8)
                elif cons.cls in ("valu", "vmem", "ds"):
                    if p.w & (cons.r | cons.w): req = max(req, 12 if big else 8)
                    if cons.cls == "valu" and p.srcc & cons.w: req = max(req, 7 if big else 3)
                    if cons.cls in ("vmem", "ds") and p.srcc & cons.w: req = max(req, 7 if big else 3)
            if p.cls == "salu":
                if regs_of("m0") & p.w and cons.cls in ("vmem",) and cons.lds_dma: req = max(req, 1)
            if p.cls == "vmem" and p.widestore:
                if p.widestore & cons.w: req = max(req, 2)
            n = max(n, req - age)
        return n
    def flush_need():
        n = 0
        for (p, age) in hist:
            req = 0
            if p.cls == "valu": req = 5 if any(not isv(x) for x in p.w) else 2
            if p.cls == "mfma": req = 12 if p.passes == 8 else 8
            if p.cls == "salu" and regs_of("m0") & p.w: req = 1
            if p.cls == "vmem" and p.widestore: req = 2
            n = max(n, req - age)
        return n
    def advance(ws):
        nonlocal hist
        hist = [(p, a + ws) for (p, a) in hist if a + ws < 13]
    def emit_nop(n):
        while n > 0:
            k = min(n, 16)
            out.append(f"  s_nop {k-1}")
            advance(k); n -= k
    for line in lines:
        i = parse(line)
        if i.cls in ("label", "none"):
            out.append(line); continue
        light = ";light" in line
        if i.cls == "branch" and not light:
            n = max(need(i), flush_need() - 1)
        else:
            n = need(i)
        if ";ws0" in line: i.ws = 0
        emit_nop(n)
        out.append(line)
        advance(i.ws)
        if i.cls == "branch" and i.mn in ("s_branch", "s_setpc_b64", "s_endpgm"):
            hist = []
        elif i.cls in ("valu", "mfma", "salu", "vmem"):
            hist.append((i, 0))
    return out

KD = """
.section .rodata,"a"
.p2align 6
.amdhsa_kernel {label}
  .amdhsa_next_free_vgpr {vgpr}
  .amdhsa_next_free_sgpr {sgpr}
  .amdhsa_accum_offset {accum}
  .amdhsa_group_segment_fixed_size 0
  .amdhsa_kernarg_size 104
  .amdhsa_user_sgpr_count 2
  .amdhsa_user_sgpr_kernarg_segment_ptr 1
  .amdhsa_system_sgpr_workgroup_id_x 1
.end_amdhsa_kernel
"""
class Asm:
    def __init__(self):
        self.lines = []
        self.nlabel = 0
    ws0 = False
    def __call__(self, s):
        for l in s.strip("\n").split("\n"):
            l = l.strip()
            if l: self.lines.append("  " + l + (" ;ws0" if self.ws0 and ";ws0" not in l else ""))
    def label(self, name):
        self.lines.append(name + ":")
    def newlabel(self, p="L"):
        self.nlabel += 1
        return f"{p}_{self.nlabel}"
    def body(self):
        return "\n".join(hazard_pass(self.lines))
    def text(self, grid, block, lds, vgpr=256, sgpr=102, accum=256, header=""):
        label = NAME + "_kernel"
        return (header + f"; @launch grid=({grid},1,1) block=({block},1,1) lds={lds}\n"
                + '.amdgcn_target "amdgcn-amd-amdhsa--gfx950"\n.text\n'
                + f".globl {label}\n.p2align 8\n.type {label},@function\n{label}:\n"
                + self.body() + "\n  s_endpgm\n"
                + KD.format(label=label, vgpr=vgpr, sgpr=sgpr, accum=accum))
```

```python
import sys, argparse, math
from gen import *

A_REC = 640
WS_A = 0x0
WS_A_CH = 32 * 8 * A_REC
WS_Q = 0xA0000
WS_PB = 0xA8000
WS_PV_CH = 8 * 2304
WS_H = 0xBA000
WS_H_CH = 9216
WS_PD = 0xC3000
WS_FLAG = 0xD5000
WS_STAMP = 0x100000
WS_SIZE = 0x200000
SENT = -1
CSCALE = math.log2(math.e) / math.sqrt(128.0)
import struct
def f32(x): return struct.unpack("<I", struct.pack("<f", x))[0]

class Opt: pass

def srd(a, dst, lo, nbytes):
    a(f"""s_mov_b32 s{dst}, s{lo}
    s_and_b32 s{dst+1}, s{lo+1}, 0xffff
    s_mov_b32 s{dst+2}, {hex(nbytes)}
    s_mov_b32 s{dst+3}, 0x20000""")

P_X, P_K, P_V, P_WQ, P_WO, P_BX, P_W1, P_B1, P_W2, P_B2, P_OUT, P_DBG, P_WS = [56 + 2 * i for i in range(13)]
S_K, S_V, S_WS, S_DBG = 8, 12, 16, 20

class Stamp:
    def __init__(self, a, on, base=84, tmp=82, nmax=18): self.a, self.on, self.n, self.base, self.tmp, self.nmax = a, on, 0, base, tmp, nmax
    def mark(self, loop_reg=None, loop_n=1):
        if not self.on: return
        assert self.n + loop_n <= self.nmax, self.n
        self.a(f"s_memrealtime s[{self.tmp}:{self.tmp+1}]")
        self.a("s_waitcnt lgkmcnt(0)")
        if loop_reg is None:
            self.a(f"s_mov_b32 s{self.base+self.n}, s{self.tmp}")
        else:
            for k in range(loop_n):
                self.a(f"s_cmp_eq_u32 s{loop_reg}, {k}")
                self.a(f"s_cselect_b32 s{self.base+self.n+k}, s{self.tmp}, s{self.base+self.n+k}")
        self.n += loop_n
    def mark_if(self, reg, val):
        if not self.on: return
        assert self.n < self.nmax
        self.a(f"s_memrealtime s[{self.tmp}:{self.tmp+1}]")
        self.a("s_waitcnt lgkmcnt(0)")
        self.a(f"s_cmp_eq_u32 s{reg}, {val}")
        self.a(f"s_cselect_b32 s{self.base+self.n}, s{self.tmp}, s{self.base+self.n}")
        self.n += 1
    def dump(self, tmp, dbgmap=None):
        if not self.on: return
        a = self.a
        if self.on == 2 and dbgmap:
            a("s_mov_b64 exec, 1")
            for (slot, dw, inv) in dbgmap:
                if inv: a(f"s_not_b32 s{self.tmp}, s{self.base+slot}")
                else: a(f"s_mov_b32 s{self.tmp}, s{self.base+slot}")
                a(f"v_mov_b32 v{tmp+1}, s{self.tmp}")
                a(f"v_mov_b32 v{tmp}, {4*dw}")
                a(f"buffer_atomic_umax v{tmp+1}, v{tmp}, s[{S_DBG}:{S_DBG+3}], 0 offen sc1")
                a("s_waitcnt vmcnt(0)")
            a("s_mov_b64 exec, -1")
            self.n = 0
            return
        t = self.tmp
        a(f"""s_lshl_b32 s{t}, s2, 2
        s_add_u32 s{t}, s{t}, s3
        s_lshl_b32 s{t}, s{t}, 7
        s_add_u32 s{t}, s{t}, {WS_STAMP}
        v_mov_b32 v{tmp}, 0""")
        for k in range(self.nmax):
            a(f"v_mov_b32 v{tmp+1}, s{self.base+k}")
            a(f"buffer_store_dword v{tmp+1}, v{tmp}, s[{S_WS}:{S_WS+3}], s{t} offen offset:{4*k}")
        self.n = 0

def vm_wait(a, n):
    if n <= 62: a(f"s_waitcnt vmcnt({n})")

CAP = 60
def set_cap(c):
    global CAP
    CAP = c
NB_LDS = 5
NB = 19
G0 = [0, 1, 2, 11, 12, 13, 14, 15]
G1 = [3, 4, 5, 6, 7, 8, 9, 10]
G2 = [16, 17, 18]
UT = {}
for _u, _g in enumerate((G0, G1, G2)):
    for _t, _b in enumerate(_g): UT[_b] = (_u, _t)
sKB2 = 54
def k_home(rb, e, j):
    r = (rb * 4 + e * 2 + j) * 4
    return f"a[{r}:{r+3}]"
def v_home(rb, i):
    s = rb * 4 + i
    if s < 8: r = 224 + 4 * s; return f"a[{r}:{r+3}]"
    r = 64 + 4 * (s - 8); return f"v[{r}:{r+3}]"

VKOFF, VVOFF, VLDS, SH01, SH23, VPA, VPB = 1, 2, 3, 4, 5, 6, 8
VL, VT = 10, 11
VACC = 12
VQ = 16
VPK = 32
VD = 44
VLT = 56
sKB, sLDSB, sP, sT19, sOFF, sREC, sQB, sHEAD, sSPLIT, sCNT, sQL = 24, 25, 26, 27, 28, 30, 31, 32, 33, 34, 35
sEX = 46
sC = 48
sMSK = 56
MISC = 144 * 1024
M_ST = MISC
M_O = MISC + 256
M_STASH = MISC + 4096
M_Q = MISC + 8192
VAHEAD = 3

class LoadSeq:
    def __init__(self, a, opt, kb=None): self.a, self.opt, self.n, self.kb = a, opt, 0, (kb or sKB)
    nocap = False
    def cap(self):
        self.n += 1
        if self.n > CAP and not self.nocap: self.a(f"s_waitcnt vmcnt({CAP-1})")
    def k_loads(self, beta):
        a = self.a; fl = self.opt.kvflags
        a(f"s_add_u32 s{sOFF}, s{self.kb}, {beta*4096}")
        for e in range(2):
            for j in range(2):
                self.cap()
                if beta < NB_LDS:
                    a(f"s_add_u32 m0, s{sLDSB}, {beta*8192 + (e*2+j)*1024}")
                    a(f"s_add_u32 s51, s{sOFF}, {e*512 + j*128}")
                    a(f"buffer_load_dwordx4 v{VKOFF}, s[{S_K}:{S_K+3}], s51 offen {fl} lds")
                else:
                    a(f"buffer_load_dwordx4 {k_home(beta-NB_LDS, e, j)}, v{VKOFF}, s[{S_K}:{S_K+3}], s{sOFF} offen offset:{e*512+j*128} {fl}")
    def v_loads(self, beta):
        a = self.a; fl = self.opt.kvflags if self.opt.vflags is None else self.opt.vflags
        a(f"s_add_u32 s{sOFF}, s{self.kb}, {beta*4096}")
        if beta < NB_LDS:
            a(f"s_add_u32 m0, s{sLDSB}, {beta*8192 + 4096}")
        for i in range(4):
            self.cap()
            if beta < NB_LDS:
                a(f"buffer_load_dwordx4 v{VVOFF}, s[{S_V}:{S_V+3}], s{sOFF} offen offset:{i*1024} {fl} lds")
            else:
                a(f"buffer_load_dwordx4 {v_home(beta-NB_LDS, i)}, v{VVOFF}, s[{S_V}:{S_V+3}], s{sOFF} offen offset:{i*1024} {fl}")
    def opt_block(self, fn):
        a = self.a; L = a.newlabel("Lopt")
        a(f"s_cmp_eq_u32 s{sT19}, 0")
        a(f"s_cbranch_scc1 {L}")
        fn(0)
        a.label(L)

def q_load1(a, reg):
    a(f"v_lshlrev_b32 v{VT}, 2, v0")
    a(f"buffer_load_dword v{reg}, v{VT}, s[{S_WS}:{S_WS+3}], s{sQB} offen sc1")

def q_to_regs(a, slot):
    T = VLT
    a(f"""v_bfe_u32 v{T}, v0, 3, 1
    v_lshlrev_b32 v{T}, 6, v{T}                ; (n>>3)*64
    v_lshrrev_b32 v{T+1}, 4, v0
    v_lshl_add_u32 v{T}, v{T+1}, 4, v{T}       ; + g*16
    v_add_u32 v{T}, s{sQL}, v{T}
    v_xor_b32 v{T+1}, 64, v{T}""")
    for e in range(2):
        for j in range(2):
            r = VQ + e * 8 + j * 4
            a(f"ds_read_b128 v[{r}:{r+3}], v{T+e} offset:{slot*256 + j*128}")
    a("s_waitcnt lgkmcnt(0)")

def q_store_lds(a, reg, slot):
    a(f"v_lshlrev_b32 v{VT}, 2, v0")
    a(f"v_add_u32 v{VT}, s{sQL}, v{VT}")
    a(f"ds_write_b32 v{VT}, v{reg} offset:{slot*256}")
    a("s_waitcnt lgkmcnt(0)")

def q_poll(a, opt, slot):
    L, Ldone = a.newlabel("Lqp"), a.newlabel("Lqd")
    oks = [a.newlabel("Lqk") for _ in range(4)]
    a(f"s_mov_b32 s{sCNT}, 0")
    a(f"v_lshlrev_b32 v{VT}, 2, v0")
    ld = lambda k: a(f"buffer_load_dword v{VACC+k}, v{VT}, s[{S_WS}:{S_WS+3}], s{sQB} offen sc1")
    for k in range(4):
        ld(k)
        if k < 3: a("s_sleep 2")
    a.label(L)
    for k in range(4):
        a("s_waitcnt vmcnt(3)")
        a(f"v_cmp_eq_u32 vcc, -1, v{VACC+k}")
        a(f"s_cbranch_vccz {oks[k]}")
        ld(k)
    a(f"""s_add_u32 s{sCNT}, s{sCNT}, 1
    s_cmp_lt_u32 s{sCNT}, {opt.spin}
    s_cbranch_scc1 {L}""")
    a("s_waitcnt vmcnt(0)")
    for k in range(4):
        a.label(oks[k])
        a(f"v_add_u32 v{VT}, s{sQL}, v{VT}")
        a(f"ds_write_b32 v{VT}, v{VACC+k} offset:{slot*256}")
        if k < 3: a(f"s_branch {Ldone}")
    a.label(Ldone)
    a("s_waitcnt lgkmcnt(0)")

def wave_reduce(a, reg, op, tmp_s):
    for sh in (8, 4, 2, 1):
        a(f"{op}_dpp v{reg}, v{reg}, v{reg} row_ror:{sh} row_mask:0xf bank_mask:0xf")
    for k in range(4): a(f"v_readlane_b32 s{tmp_s+k}, v{reg}, {16*k}")
    a(f"v_mov_b32 v{reg}, s{tmp_s}")
    for k in range(1, 4): a(f"{op} v{reg}, s{tmp_s+k}, v{reg}")

def attention(a, opt, st):
    a(f"""
    s_lshr_b32 s{sHEAD}, s2, 3
    s_and_b32 s{sSPLIT}, s2, 7
    s_lshl_b32 s50, s{sSPLIT}, 2
    s_add_u32 s50, s50, s3                 ; omega
    s_cmp_eq_u32 s3, 0
    s_cselect_b32 s{sT19}, 1, 0
    s_cmp_eq_u32 s50, 1
    s_cselect_b32 s{sT19}, 1, s{sT19}
    s_mul_i32 s51, s50, 18
    s_add_u32 s52, s50, 3
    s_lshr_b32 s52, s52, 2
    s_add_u32 s51, s51, s52
    s_cmp_ge_u32 s50, 2
    s_addc_u32 s51, s51, 0
    s_add_u32 s51, s51, s{sT19}
    s_sub_u32 s51, s51, 1
    s_lshl_b32 s51, s51, 12
    s_lshl_b32 s{sKB}, s{sHEAD}, 21
    s_add_u32 s{sKB}, s{sKB}, s51
    s_mul_i32 s{sLDSB}, s3, {40*1024}
    s_cmp_ge_u32 s3, 2
    s_cselect_b32 s52, {8*1024}, 0
    s_sub_u32 s{sLDSB}, s{sLDSB}, s52
    s_cmp_eq_u32 s3, 3
    s_cselect_b32 s52, {8*1024}, 0
    s_sub_u32 s{sLDSB}, s{sLDSB}, s52
    s_lshl_b32 s{sQL}, s3, 9
    s_add_u32 s{sQL}, s{sQL}, {M_Q}
    """)
    a(f"""
    v_and_b32 v{VT}, 15, v0                ; m / n / c
    v_lshrrev_b32 v{VL}, 4, v0             ; g
    v_and_b32 v{VKOFF}, 3, v{VT}
    v_lshlrev_b32 v{VKOFF}, 2, v{VKOFF}
    v_bfe_u32 v{VVOFF}, v{VT}, 2, 1
    v_add_u32 v{VKOFF}, v{VKOFF}, v{VVOFF} ; key
    v_lshlrev_b32 v{VKOFF}, 8, v{VKOFF}
    v_lshrrev_b32 v{VVOFF}, 3, v{VT}
    v_lshlrev_b32 v{VVOFF}, 6, v{VVOFF}
    v_lshl_add_u32 v{VVOFF}, v{VL}, 4, v{VVOFF}
    v_add_u32 v{VKOFF}, v{VKOFF}, v{VVOFF}
    v_lshlrev_b32 v{VVOFF}, 4, v0
    v_add_u32 v{VLDS}, s{sLDSB}, v{VVOFF}
    """)
    st.mark()
    ls = LoadSeq(a, opt)
    ls.opt_block(ls.k_loads)
    for b in range(1, 4): ls.k_loads(b)
    a(f"""v_lshlrev_b32 v{VL}, 4, v{VT}
    v_mov_b32 v{SH01}, 63
    v_cmp_gt_u32 vcc, 4, v{VT}
    v_cndmask_b32 v{SH01}, v{SH01}, v{VL}, vcc
    v_subrev_u32 v{VL}, 64, v{VL}
    v_mov_b32 v{SH23}, 63
    v_cmp_gt_u32 vcc, 64, v{VL}
    v_cndmask_b32 v{SH23}, v{SH23}, v{VL}, vcc
    v_mov_b32 v7, 0
    v_mov_b32 v9, 0
    s_mov_b32 s{sC}, {hex(f32(CSCALE))}""")
    for tau in range(8):
        lo, hi = (0x00010001 << tau), (0x01000100 << tau)
        a(f"""s_mov_b32 s{sMSK+4*tau}, {hex(lo)}
        s_mov_b32 s{sMSK+4*tau+1}, {hex(hi)}
        s_mov_b32 s{sMSK+4*tau+2}, {hex(hi)}
        s_mov_b32 s{sMSK+4*tau+3}, {hex(lo)}""")
    a(f"""
    s_lshl_b32 s{sREC}, s{sHEAD}, 3
    s_add_u32 s{sREC}, s{sREC}, s{sSPLIT}
    s_mul_i32 s{sREC}, s{sREC}, {A_REC}
    """)
    Lc = a.newlabel("Lclr")
    a(f"s_cmp_eq_u32 s3, 3")
    a(f"s_cbranch_scc0 {Lc}")
    a(f"""v_mov_b32 v{VACC}, -1
    v_mov_b32 v{VACC+1}, -1
    v_mov_b32 v{VACC+2}, -1
    v_mov_b32 v{VACC+3}, -1
    s_mov_b32 exec_hi, 1""")
    for n in range(4):
        a(f"s_add_u32 s{sOFF}, s{sREC}, {WS_A + n*WS_A_CH}")
        a(f"buffer_store_dwordx4 v[{VACC}:{VACC+3}], v{VVOFF}, s[{S_WS}:{S_WS+3}], s{sOFF} offen sc0 sc1")
    a(f"""s_mov_b64 exec, -1
    s_waitcnt vmcnt(0)
    v_mov_b32 v{VACC}, 1
    v_mov_b32 v{VACC+1}, 0
    s_mov_b64 exec, 1
    buffer_atomic_add v{VACC}, v{VACC+1}, s[{S_DBG}:{S_DBG+3}], 0 offen sc1
    s_mov_b64 exec, -1""")
    a.label(Lc)
    for b in range(4, NB):
        ls.k_loads(b)
        if b == 14:
            a(f"v_mov_b32 v{VACC}, 128")
            a(f"buffer_load_dwordx2 v[{VL}:{VT}], v{VACC}, s[{S_DBG}:{S_DBG+3}], 0 offen sc1")
            ls.n += 1
    a(f"s_waitcnt vmcnt({min(16, CAP)})")
    Lok, Lsp = a.newlabel("Lcok"), a.newlabel("Lcsp")
    a(f"s_mov_b32 s{sCNT}, 0")
    a.label(Lsp)
    a(f"v_sad_u8 v{VL}, v{VL}, 0, 0")
    a(f"v_sad_u8 v{VL}, v{VT}, 0, v{VL}")
    a(f"v_readfirstlane_b32 s52, v{VL}")
    a(f"s_cmp_ge_u32 s52, {opt.nchain}")
    a(f"s_cbranch_scc1 {Lok}")
    a(f"""buffer_load_dwordx2 v[{VL}:{VT}], v{VACC}, s[{S_DBG}:{S_DBG+3}], 0 offen sc1
    s_waitcnt vmcnt(0)
    s_add_u32 s{sCNT}, s{sCNT}, 1
    s_cmp_lt_u32 s{sCNT}, {opt.spin}
    s_cbranch_scc1 {Lsp}""")
    a.label(Lok)
    a(f"""s_lshl_b32 s{sQB}, s{sHEAD}, 8
    s_add_u32 s{sQB}, s{sQB}, {WS_Q}""")
    q_load1(a, VACC)
    ls.nocap = True
    ls.opt_block(ls.v_loads)
    for b in range(1, VAHEAD + 1): ls.v_loads(b)
    a(f"s_waitcnt vmcnt({4*VAHEAD})")
    Lq, Lq2 = a.newlabel("Lq1ok"), a.newlabel("Lq1d")
    a(f"v_cmp_eq_u32 vcc, -1, v{VACC}")
    a(f"s_cbranch_vccz {Lq}")
    q_poll(a, opt, 0)
    a("s_waitcnt vmcnt(0)")
    a(f"s_branch {Lq2}")
    a.label(Lq)
    q_store_lds(a, VACC, 0)
    a.label(Lq2)
    q_to_regs(a, 0)
    a(f"s_mov_b32 s{sP}, 0")
    st.mark()
    a.label("L_pass")
    st.mark(sP, 4)
    for k in range(12): a(f"v_mov_b32 v{VPK+k}, 0xff800000")
    if opt.v2:
        Lst = a.newlabel("Lstash")
        a(f"s_cmp_eq_u32 s{sP}, 2")
        a(f"s_cbranch_scc0 {Lst}")
        a(f"s_lshl_b32 s52, s3, 10")
        a(f"s_add_u32 s52, s52, {M_STASH}")
        a(f"v_add_u32 v{VT}, s52, v{VVOFF}")
        a(f"ds_read_b128 v[{VPK+4}:{VPK+7}], v{VT}")
        a("s_waitcnt lgkmcnt(0)")
        a.label(Lst)
    pend = []
    state = {"d": 0}
    def cnd_ops(d, b, e):
        u, tau = UT[b]
        mk = sMSK + 4 * tau + 2 * e
        return [f"v_cndmask_b32 v{VPK+4*u+i}, v{VPK+4*u+i}, v{VD+4*d+i}, s[{mk}:{mk+1}]" for i in range(4)]
    def tile(b, e, A0, A1):
        d = state["d"]; state["d"] = (d + 1) % 3
        D = f"v[{VD+4*d}:{VD+4*d+3}]"
        q0 = VQ + e * 8
        c = cnd_ops(*pend.pop(0)) if len(pend) == 2 else []
        a(f"v_mfma_f32_16x16x32_bf16 {D}, {A0}, v[{q0}:{q0+3}], 0")
        for o in c[:2]: a(o)
        a(f"v_mfma_f32_16x16x32_bf16 {D}, {A1}, v[{q0+4}:{q0+7}], {D}")
        for o in c[2:]: a(o)
        pend.append((d, b, e))
    def flush():
        while pend:
            for o in cnd_ops(*pend.pop(0)): a(o)
    def lds_read_tile(b, e):
        a(f"ds_read_b128 v[{VLT}:{VLT+3}], v{VLDS} offset:{b*8192 + (e*2)*1024}")
        a(f"ds_read_b128 v[{VLT+4}:{VLT+7}], v{VLDS} offset:{b*8192 + (e*2+1)*1024}")
    LT0, LT1 = f"v[{VLT}:{VLT+3}]", f"v[{VLT+4}:{VLT+7}]"
    Lo = a.newlabel("Lqk0")
    a(f"s_cmp_eq_u32 s{sT19}, 0")
    a(f"s_cbranch_scc1 {Lo}")
    for e in range(2):
        lds_read_tile(0, e)
        a("s_waitcnt lgkmcnt(0)")
        tile(0, e, LT0, LT1)
    flush()
    a.label(Lo)
    state["d"] = 0
    def qk_part(lds_blocks, reg_blocks):
        lt_ = [(b, e) for b in lds_blocks for e in range(2)]
        rt_ = [(b, e) for b in reg_blocks for e in range(2)]
        per = len(rt_) // len(lt_)
        ri = 0
        for (b, e) in lt_:
            lds_read_tile(b, e)
            for _ in range(per):
                (rb, re_) = rt_[ri]; ri += 1
                tile(rb, re_, k_home(rb-NB_LDS, re_, 0), k_home(rb-NB_LDS, re_, 1))
            a("s_waitcnt lgkmcnt(0)")
            tile(b, e, LT0, LT1)
        while ri < len(rt_):
            (rb, re_) = rt_[ri]; ri += 1
            tile(rb, re_, k_home(rb-NB_LDS, re_, 0), k_home(rb-NB_LDS, re_, 1))
    if opt.v2:
        qk_part([1, 2], [11, 12, 13, 14, 15, 16, 17, 18])
        Lsk = a.newlabel("Lqkb")
        flush()
        a(f"s_cmp_eq_u32 s{sP}, 2")
        a(f"s_cbranch_scc1 {Lsk}")
        state["d"] = 0
        qk_part([3, 4], [5, 6, 7, 8, 9, 10])
        flush()
        a.label(Lsk)
    else:
        qk_part([1, 2, 3, 4], list(range(5, NB)))
        flush()
    st.mark_if(sP, 3)
    Lr0, Lr1 = a.newlabel("Lrl0"), a.newlabel("Lrl1")
    a(f"s_bitcmp1_b32 s{sP}, 0")
    a(f"s_cbranch_scc0 {Lr1}")
    a("s_waitcnt vmcnt(0)")
    a(f"s_cmp_eq_u32 s{sP}, 1")
    a(f"s_cbranch_scc0 {Lr1}")
    a(f"s_add_u32 s{sKB}, s{sKB}, 0x4000000")
    ls2 = LoadSeq(a, opt); ls2.nocap = True
    ls2.opt_block(ls2.k_loads)
    klist = [b for b in range(1, NB) if not (opt.v2 and b in G1)]
    K_EARLY = opt.kearly
    for b in klist[:K_EARLY]: ls2.k_loads(b)
    a.label(Lr1)
    for k in range(12):
        a(f"v_mov_b32_dpp v{VD+k}, v{VPK+k} row_ror:8 row_mask:0xf bank_mask:0xf")
    for k in range(12):
        a(f"v_permlane32_swap_b32 v{VPK+k}, v{VD+k}")
    for k in range(12):
        a(f"v_add_f32_dpp v{VPK+k}, v{VD+k}, v{VPK+k} row_ror:8 row_mask:0xf bank_mask:0xf")
    a(f"v_max3_f32 v{VT}, v{VPK}, v{VPK+1}, v{VPK+2}")
    for k in range(3, 11, 2): a(f"v_max3_f32 v{VT}, v{VT}, v{VPK+k}, v{VPK+k+1}")
    a(f"v_max_f32 v{VT}, v{VT}, v{VPK+11}")
    wave_reduce(a, VT, "v_max_f32", 50)
    st.mark_if(sP, 3)
    a(f"v_mul_f32 v{VT}, s{sC}, v{VT}")
    for k in range(12): a(f"v_fma_f32 v{VPK+k}, v{VPK+k}, s{sC}, -v{VT}")
    for k in range(12): a(f"v_exp_f32 v{VPK+k}, v{VPK+k}")
    a(f"v_add_f32 v{VL}, v{VPK}, v{VPK+1}")
    for k in range(2, 12): a(f"v_add_f32 v{VL}, v{VL}, v{VPK+k}")
    for k in range(12): a(f"v_cvt_pk_bf16_f32 v{VPK+k}, v{VPK+k}, 0")
    for k in range(4): a(f"v_mov_b32 v{VACC+k}, 0")
    st.mark_if(sP, 3)
    ACC = f"v[{VACC}:{VACC+3}]"
    stt = {"a": 0, "prev": None, "pp": None}
    def bc(b, i):
        s_ = stt["a"]; stt["a"] ^= 1
        u, tau = UT[b]
        P = VPA if s_ == 0 else VPB
        a(f"v_mov_b32_dpp v{P}, v{VPK+4*u+i} row_newbcast:{tau} row_mask:0xf bank_mask:0xf")
        return (P, s_)
    def sh(P, s_):
        A = VD + 4 * s_
        a(f"v_lshlrev_b64 v[{A}:{A+1}], v{SH01}, v[{P}:{P+1}]")
        a(f"v_lshlrev_b64 v[{A+2}:{A+3}], v{SH23}, v[{P}:{P+1}]")
        return f"v[{A}:{A+3}]"
    pipe = []
    def slot(b, i, B, pre=None):
        pipe.append({"P": bc(b, i), "B": B, "pre": pre, "A": None})
        if len(pipe) >= 2: pipe[-2]["A"] = sh(*pipe[-2]["P"])
        if len(pipe) == 3:
            p = pipe.pop(0)
            if p["pre"]: p["pre"]()
            a(f"v_mfma_f32_16x16x32_bf16 {ACC}, {p['A']}, {p['B']}, {ACC}")
    def pv_flush():
        while pipe:
            if pipe[-1]["A"] is None: pipe[-1]["A"] = sh(*pipe[-1]["P"])
            p = pipe.pop(0)
            if p["pre"]: p["pre"]()
            a(f"v_mfma_f32_16x16x32_bf16 {ACC}, {p['A']}, {p['B']}, {ACC}")
    Lres, Lpvd = a.newlabel("Lpvres"), a.newlabel("Lpvd")
    a(f"s_bitcmp1_b32 s{sP}, 0")
    a(f"s_cbranch_scc1 {Lres}")
    lv = LoadSeq(a, opt); lv.nocap = True
    lt3 = [VLT, VLT + 4, VD + 8]
    def arrival_block(b, last):
        if b + VAHEAD < NB and b >= 1: lv.v_loads(b + VAHEAD)
        after = min(NB - 1, b + VAHEAD) - b if b >= 1 else VAHEAD
        a(f"s_waitcnt vmcnt({4*after})")
        if b < NB_LDS:
            for i in range(4):
                t = lt3[i % 3] if i < 3 else lt3[0]
                if i < 3: a(f"ds_read_b128 v[{t}:{t+3}], v{VLDS} offset:{b*8192 + 4096 + i*1024}")
            for i in range(4):
                t = lt3[i % 3]
                if i == 3:
                    pv_flush()
                    a(f"ds_read_b128 v[{t}:{t+3}], v{VLDS} offset:{b*8192 + 4096 + 3*1024}")
                slot(b, i, f"v[{t}:{t+3}]", pre=(lambda: a("s_waitcnt lgkmcnt(0)")))
            pv_flush()
        else:
            for i in range(4): slot(b, i, v_home(b - NB_LDS, i))
    Lo = a.newlabel("Lpa0")
    a(f"s_cmp_eq_u32 s{sT19}, 0")
    a(f"s_cbranch_scc1 {Lo}")
    arrival_block(0, False)
    a.label(Lo)
    stt["a"] = 0
    for b in range(1, NB): arrival_block(b, b == NB - 1)
    pv_flush()
    a(f"s_branch {Lpvd}")
    a.label(Lres)
    stt["a"] = 0
    Lo = a.newlabel("Lpv0")
    a(f"s_cmp_eq_u32 s{sT19}, 0")
    a(f"s_cbranch_scc1 {Lo}")
    for i in range(3): a(f"ds_read_b128 v[{lt3[i]}:{lt3[i]+3}], v{VLDS} offset:{4096 + i*1024}")
    for i in range(3): slot(0, i, f"v[{lt3[i]}:{lt3[i]+3}]", pre=(lambda: a("s_waitcnt lgkmcnt(0)")))
    pv_flush()
    a(f"ds_read_b128 v[{VLT}:{VLT+3}], v{VLDS} offset:{4096 + 3*1024}")
    slot(0, 3, f"v[{VLT}:{VLT+3}]", pre=(lambda: a("s_waitcnt lgkmcnt(0)")))
    pv_flush()
    a.label(Lo)
    stt["a"] = 0
    lds_items = [(b, i) for b in range(1, NB_LDS) for i in range(4)]
    reg_items = [(b, i) for b in range(NB_LDS, NB) for i in range(4)]
    lq = []; li = [0]
    def lds_issue():
        if li[0] < len(lds_items):
            b, i = lds_items[li[0]]; t = lt3[li[0] % 3]; li[0] += 1
            a(f"ds_read_b128 v[{t}:{t+3}], v{VLDS} offset:{b*8192 + 4096 + i*1024}")
            lq.append((b, i, t))
    lds_issue(); lds_issue(); lds_issue()
    cnt = 0; since = []
    for (b, i) in reg_items:
        slot(b, i, v_home(b - NB_LDS, i))
        cnt += 1
        since = [x + 1 for x in since]
        if since and since[0] >= 2:
            since.pop(0); lds_issue()
        if cnt % 3 == 0 and lq:
            lb, lidx, t = lq.pop(0)
            na = len(lq)
            slot(lb, lidx, f"v[{t}:{t+3}]", pre=(lambda n=na: a(f"s_waitcnt lgkmcnt({n})")))
            since = [x + 1 for x in since]
            since.append(0)
    assert not lq and li[0] == len(lds_items), (lq, li)
    pv_flush()
    a.label(Lpvd)
    st.mark_if(sP, 3)
    wave_reduce(a, VL, "v_add_f32", 50)
    a(f"""v_mov_b32 v{VD}, v{VT}
    v_mul_f32 v{VD+1}, 0.5, v{VL}
    s_lshl_b32 s52, s3, 3
    s_add_u32 s52, s52, {M_ST}
    v_mov_b32 v{VD+2}, s52
    ds_write_b64 v{VD+2}, v[{VD}:{VD+1}]
    v_and_b32 v{VD+3}, 15, v0
    v_lshlrev_b32 v{VD+3}, 5, v{VD+3}
    v_lshrrev_b32 v{VD+4}, 4, v0
    v_lshl_add_u32 v{VD+3}, v{VD+4}, 4, v{VD+3}
    s_lshl_b32 s52, s3, 9
    s_add_u32 s52, s52, {M_O}
    v_add_u32 v{VD+3}, s52, v{VD+3}
    s_mov_b32 exec_hi, 0
    ds_write_b128 v{VD+3}, v[{VACC}:{VACC+3}]
    s_mov_b64 exec, -1
    s_waitcnt lgkmcnt(0)
    s_barrier""")
    Lp = a.newlabel("Lpub")
    a(f"s_cmp_eq_u32 s3, 0")
    a(f"s_cbranch_scc0 {Lp}")
    a(f"v_add_u32 v{VD}, {M_O}, v{VVOFF}")
    a(f"v_mov_b32 v{VD+1}, {M_ST}")
    a(f"ds_read_b128 v[{VPK}:{VPK+3}], v{VD+1}")
    a(f"ds_read_b128 v[{VPK+4}:{VPK+7}], v{VD+1} offset:16")
    O = [VD + 4, VD + 8, VLT, VLT + 4]
    for w in range(4): a(f"ds_read_b128 v[{O[w]}:{O[w]+3}], v{VD} offset:{w*512}")
    a(f"""s_mul_i32 s52, s{sP}, {WS_A_CH}
    s_add_u32 s52, s52, s{sREC}
    s_waitcnt lgkmcnt(4)
    v_max_f32 v{VT}, v{VPK}, v{VPK+2}
    v_max3_f32 v{VT}, v{VT}, v{VPK+4}, v{VPK+6}""")
    for w in range(4): a(f"v_sub_f32 v{VPK+2*w}, v{VPK+2*w}, v{VT}")
    for w in range(4): a(f"v_exp_f32 v{VPK+2*w}, v{VPK+2*w}")
    a(f"v_mul_f32 v{VL}, v{VPK}, v{VPK+1}")
    for w in range(1, 4): a(f"v_fmac_f32 v{VL}, v{VPK+2*w}, v{VPK+2*w+1}")
    a("s_waitcnt lgkmcnt(0)")
    for c in range(4): a(f"v_mul_f32 v{O[0]+c}, v{O[0]+c}, v{VPK}")
    for w in range(1, 4):
        for c in range(4): a(f"v_fmac_f32 v{O[0]+c}, v{O[w]+c}, v{VPK+2*w}")
    a(f"""v_cmp_eq_u32 vcc, 32, v0
    v_cndmask_b32 v{O[0]}, v{O[0]}, v{VT}, vcc
    v_cndmask_b32 v{O[0]+1}, v{O[0]+1}, v{VL}, vcc
    s_mov_b32 exec_hi, 1
    buffer_store_dwordx4 v[{O[0]}:{O[0]+3}], v{VVOFF}, s[{S_WS}:{S_WS+3}], s52 offen sc0 sc1
    s_mov_b64 exec, -1""")
    a.label(Lp)
    a("s_barrier")
    st.mark(sP, 4)
    Lnr, Lend = a.newlabel("Lnr"), a.newlabel("Laend")
    a(f"s_cmp_eq_u32 s{sP}, 3")
    a(f"s_cbranch_scc1 {Lend}")
    a(f"s_cmp_eq_u32 s{sP}, 1")
    a(f"s_cbranch_scc0 {Lnr}")
    ls2.nocap = False; ls2.n = 1000
    for b in klist[K_EARLY:]: ls2.k_loads(b)
    ls2.nocap = True
    ls2.opt_block(ls2.v_loads)
    for b in range(1, VAHEAD + 1): ls2.v_loads(b)
    if opt.v2:
        q_to_regs(a, 1)
    else:
        a(f"""s_lshl_b32 s{sQB}, s{sHEAD}, 8
        s_add_u32 s{sQB}, s{sQB}, {WS_Q + 8192}""")
        raise NotImplementedError
    a(f"s_waitcnt vmcnt({4*VAHEAD})")
    a(f"s_mov_b32 s{sP}, 2")
    a("s_branch L_pass")
    a.label(Lnr)
    Lp2, Lqp = a.newlabel("Lp2"), a.newlabel("Lqp")
    a(f"s_cmp_eq_u32 s{sP}, 0")
    a(f"s_cbranch_scc0 {Lp2}")
    a(f"""s_lshl_b32 s{sQB}, s{sHEAD}, 8
    s_add_u32 s{sQB}, s{sQB}, {WS_Q + 1*8192}
    s_add_u32 s{sKB2}, s{sKB}, 0x4000000""")
    q_poll(a, opt, 1)
    a("s_waitcnt vmcnt(0)")
    q_to_regs(a, 1)
    def gate(word):
        Lg, Lgo = a.newlabel("Lgate"), a.newlabel("Lgateok")
        a(f"s_mov_b32 s{sCNT}, 0")
        a(f"v_mov_b32 v{VT}, {WS_FLAG + 4*word}")
        a.label(Lg)
        a(f"""buffer_load_dword v{VL}, v{VT}, s[{S_WS}:{S_WS+3}], 0 offen sc1
        s_waitcnt vmcnt(0)
        v_readfirstlane_b32 s52, v{VL}
        s_cmp_lg_u32 s52, -1
        s_cbranch_scc1 {Lgo}
        s_sleep 4
        s_add_u32 s{sCNT}, s{sCNT}, 1
        s_cmp_lt_u32 s{sCNT}, {opt.spin}
        s_cbranch_scc1 {Lg}""")
        a.label(Lgo)
    if opt.gate & 1: gate(0)
    TS = [(56, 60), (32, 40), (12, 52)]
    tl2 = [(b, e) for b in G1 for e in range(2)]
    outq = []
    def ld(t):
        b, e = tl2[t]
        a(f"s_add_u32 s{sOFF}, s{sKB2}, {b*4096}")
        for j in range(2):
            r = TS[t % 3][j]
            a(f"buffer_load_dwordx4 v[{r}:{r+3}], v{VKOFF}, s[{S_K}:{S_K+3}], s{sOFF} offen offset:{e*512+j*128} {opt.kvflags}")
            outq.append(t)
    def wt(tag):
        i = len(outq) - 1 - outq[::-1].index(tag)
        a(f"s_waitcnt vmcnt({len(outq) - 1 - i})")
        del outq[:i + 1]
    for t in range(3): ld(t)
    for k in range(4): a(f"v_mov_b32 v{VPK+4+k}, 0xff800000")
    prev = None
    def fin2(dd, b, e):
        u, tau = UT[b]
        mk = sMSK + 4 * tau + 2 * e
        for i in range(4):
            a(f"v_cndmask_b32 v{VPK+4+i}, v{VPK+4+i}, v{VD+4*dd+i}, s[{mk}:{mk+1}]")
    for t, (b, e) in enumerate(tl2):
        wt(t)
        dd = t % 2
        D = f"v[{VD+4*dd}:{VD+4*dd+3}]"
        q0 = VQ + e * 8
        r0, r1 = TS[t % 3]
        a(f"v_mfma_f32_16x16x32_bf16 {D}, v[{r0}:{r0+3}], v[{q0}:{q0+3}], 0")
        a(f"v_mfma_f32_16x16x32_bf16 {D}, v[{r1}:{r1+3}], v[{q0+4}:{q0+7}], {D}")
        if t + 3 < len(tl2): ld(t + 3)
        if prev: fin2(*prev)
        prev = (dd, b, e)
    fin2(*prev)
    a(f"s_lshl_b32 s52, s3, 10")
    a(f"s_add_u32 s52, s52, {M_STASH}")
    a(f"v_add_u32 v{VT}, s52, v{VVOFF}")
    a(f"ds_write_b128 v{VT}, v[{VPK+4}:{VPK+7}]")
    a("s_waitcnt lgkmcnt(0)")
    a(f"s_branch {Lqp}")
    a.label(Lp2)
    if opt.gate & 2: gate(1)
    ls3 = LoadSeq(a, opt)
    for b in G1: ls3.k_loads(b)
    a("s_waitcnt vmcnt(0)")
    a.label(Lqp)
    a(f"""s_lshr_b32 s52, s{sP}, 1
    s_add_u32 s52, s52, 2
    s_lshl_b32 s52, s52, 13
    s_lshl_b32 s{sQB}, s{sHEAD}, 8
    s_add_u32 s{sQB}, s{sQB}, s52
    s_add_u32 s{sQB}, s{sQB}, {WS_Q}""")
    q_poll(a, opt, 0)
    q_to_regs(a, 0)
    a(f"s_add_u32 s{sP}, s{sP}, 1")
    a("s_branch L_pass")
    a.label(Lend)
    st.dump(VD, [(0, 1, True), (10, 2, False), (12, 5, False), (13, 8, False), (3, 13, False), (1, 14, False)])


def prologue(a, opt):
    a(f"""
    s_cmp_ge_u32 s2, 256
    s_cbranch_scc1 L_exit
    s_load_dwordx16 s[56:71], s[0:1], 0
    s_load_dwordx8 s[72:79], s[0:1], 64
    s_load_dwordx2 s[80:81], s[0:1], 96
    v_lshrrev_b32 v1, 6, v0
    v_readfirstlane_b32 s3, v1
    v_and_b32 v0, 63, v0
    s_waitcnt lgkmcnt(0)
    """)
    srd(a, S_WS, P_WS, WS_SIZE)
    srd(a, S_DBG, P_DBG, 256)

def build(opt):
    a = Asm()
    prologue(a, opt)
    a("""s_and_b32 s4, s2, 7
    s_cmp_eq_u32 s4, 7
    s_cbranch_scc1 L_chain""")
    srd(a, S_K, P_K, 0x8000000)
    srd(a, S_V, P_V, 0x8000000)
    st = Stamp(a, opt.stamps, base=88, tmp=46, nmax=14)
    if opt.stamps:
        for k in range(14): a(f"s_mov_b32 s{88+k}, 0")
    if opt.attn: attention(a, opt, st)
    a("s_branch L_exit")
    a.label("L_chain")
    if opt.chain:
        import chain
        st = Stamp(a, opt.stamps)
        chain.chain(a, opt, st)
    a.label("L_exit")
    return a.text(256, 256, 160 * 1024, vgpr=512, sgpr=102, accum=256, header=opt.header)

if __name__ == "__main__":
    p = argparse.ArgumentParser()
    p.add_argument("--out", default="k.s")
    p.add_argument("--stamps", type=int, default=0)
    p.add_argument("--chain", type=int, default=1)
    p.add_argument("--kvflags", default="nt")
    p.add_argument("--vflags", default=None)
    p.add_argument("--spin", type=int, default=20000)
    p.add_argument("--kearly", type=int, default=3)
    p.add_argument("--wflags", default="nt")
    p.add_argument("--safe", type=int, default=0)
    p.add_argument("--attn", type=int, default=1)
    p.add_argument("--v2", type=int, default=1)
    p.add_argument("--gate", type=int, default=3)
    p.add_argument("--cap", type=int, default=60)
    p.add_argument("--initmark", type=int, default=0)
    opt = p.parse_args()
    opt.nchain = 32 if opt.chain else 0
    set_cap(opt.cap)
    opt.header = ""
    open(opt.out, "w").write(build(opt))
```

```python
from gen import *
import kern
from kern import *

S_WQ, S_WO, S_W1, S_W2, S_X, S_B1, S_B2, S_OUT = 24, 28, 32, 36, 40, 44, 48, 52
sI, sKQ, sNQ, sIT, sN, sFAST, sT0, sT1, sT2, sCN = 4, 5, 6, 7, 8, 9, 10, 11, 12, 13
sW2K, sW9K, sQI, sROW = 56, 57, 58, 15
sG1, sG2, sG3, sHI = 60, 62, 64, 66
sRL = 70

VVEC, VACT, VHB, VCSC, VXR, VBB, VHD, VCSE, VW = 1, 2, 3, 4, 5, 9, 10, 11, 12

H_EL = 0
H_DL = 56 * 1024
H_D8 = 112 * 1024
H_C8 = 130 * 1024
BUF = [56 * 1024, 83 * 1024]
L_MISC = 148 * 1024
L_ACTA = L_MISC
L_ACTB = L_MISC + 1280
L_OACT = L_MISC + 2560
L_RED = L_MISC + 3584
L_ST = L_MISC + 5888
L_XIN = L_MISC + 6144
NE_REG = 11
NRING = 11

def home(idx):
    if idx < 52: return ("v", 48 + 4 * idx)
    return ("a", 4 * (idx - 52))
def hs(idx):
    k, r = home(idx); return f"{k}[{r}:{r+3}]"
def hs2(idx, half):
    k, r = home(idx); return f"{k}[{r+2*half}:{r+2*half+1}]"
H_E = {(ks, nt): ks * 2 + nt for ks in range(NE_REG) for nt in range(2)}
H_B = {(ks, nt): 22 + ks * 9 + nt for ks in range(4) for nt in range(9)}
H_C = {(ks, nt): 58 + ks * 2 + nt for ks in range(18) for nt in range(2)}
H_D = {(ks, nt): 94 + ks * 2 + nt for ks in range(NE_REG) for nt in range(2)}

class VM:
    def __init__(self, a): self.a, self.q = a, []
    def issue(self, tag, text): self.a(text); self.q.append(tag)
    def note(self, tag): self.q.append(tag)
    def wait(self, tag):
        if tag not in self.q: return
        i = len(self.q) - 1 - self.q[::-1].index(tag)
        n = len(self.q) - 1 - i
        assert n <= 62
        self.a(f"s_waitcnt vmcnt({n})")
        del self.q[:i + 1]
    def wait_all(self):
        self.a("s_waitcnt vmcnt(0)"); self.q = []

class LQ:
    def __init__(self, a): self.a, self.q = a, []
    def issue(self, tag, text): self.a(text); self.q.append(tag); assert len(self.q) <= 15, self.q
    def need(self, tag):
        if tag not in self.q: return
        i = len(self.q) - 1 - self.q[::-1].index(tag)
        self.a(f"s_waitcnt lgkmcnt({len(self.q) - 1 - i})")
        del self.q[:i + 1]
    def drain(self):
        if self.q: self.a("s_waitcnt lgkmcnt(0)")
        self.q = []

def pub_flags(a, emit):
    L1, L2 = a.newlabel("Lsf"), a.newlabel("Lsd")
    a(f"s_cmp_eq_u32 s{sFAST}, 0")
    a(f"s_cbranch_scc1 {L1}")
    emit("")
    a(f"s_branch {L2}")
    a.label(L1)
    emit("sc0 sc1")
    a.label(L2)

def lanes_lt(a, n):
    if n <= 32:
        a(f"s_mov_b32 exec_lo, {hex((1 << n) - 1) if n < 32 else -1}")
        a("s_mov_b32 exec_hi, 0")
    else:
        a("s_mov_b32 exec_lo, -1")
        a(f"s_mov_b32 exec_hi, {hex((1 << (n - 32)) - 1)}")
def lanes_all(a): a("s_mov_b64 exec, -1")

def sent_check(a, regs, tmp):
    regs = list(regs)
    if len(regs) >= 3:
        a(f"v_max3_u32 v{tmp}, v{regs[0]}, v{regs[1]}, v{regs[2]}"); regs = regs[3:]
    else:
        a(f"v_max_u32 v{tmp}, v{regs[0]}, v{regs[1]}"); regs = regs[2:]
    while regs:
        if len(regs) >= 2: a(f"v_max3_u32 v{tmp}, v{tmp}, v{regs[0]}, v{regs[1]}"); regs = regs[2:]
        else: a(f"v_max_u32 v{tmp}, v{tmp}, v{regs[0]}"); regs = regs[1:]
    a(f"v_cmp_eq_u32 vcc, -1, v{tmp}")

def poll(a, opt, loads, check):
    L, Lok = a.newlabel("Lpl"), a.newlabel("Lpk")
    a(f"s_mov_b32 s{sCN}, 0")
    a.label(L)
    loads()
    a("s_waitcnt vmcnt(0)")
    check()
    a(f"s_cbranch_vccz {Lok}")
    a(f"""s_add_u32 s{sCN}, s{sCN}, 1
    s_cmp_lt_u32 s{sCN}, {opt.spin}
    s_cbranch_scc1 {L}""")
    a.label(Lok)

class Stager:
    def __init__(self, a, opt, vm):
        self.a, self.opt, self.vm = a, opt, vm
        self.V4, self.V1 = [VW + 24, VW + 25], VW + 26
        self.VB = [VW + 32, VW + 33, VW + 34, VW + 35]
        self.V9 = [VW + 27, VW + 28, VW + 29]
        self.TMP = VW + 30
        self.cur = None
    def tr_lane(self, dst, rowshift):
        a = self.a; T = self.TMP
        a(f"""v_lshrrev_b32 v{T}, 4, v0
        v_bfe_u32 v{T+1}, v0, 2, 2
        v_lshl_add_u32 v{T}, v{T}, 3, v{T+1}
        v_lshlrev_b32 v{T}, {rowshift}, v{T}
        v_and_b32 v{T+1}, 3, v0
        v_lshl_add_u32 v{dst}, v{T+1}, 3, v{T}""")
    def tr_lane_sw(self, dst, wave_term):
        a = self.a; T = self.TMP
        a(f"""v_bfe_u32 v{T+1}, v0, 2, 2                 ; r
        v_lshrrev_b32 v{T}, 4, v0
        v_lshl_add_u32 v{T}, v{T}, 3, v{T+1}              ; 8g + r
        v_lshlrev_b32 v{dst}, 8, v{T}
        v_bfe_u32 v{T}, v0, 1, 1                          ; c>>1
        v_lshlrev_b32 v{T+1}, 1, v{T+1}                   ; 2r""")
        if wave_term:
            a(f"s_lshl_b32 s{sT0}, s3, 2")
            a(f"v_add_u32 v{T}, s{sT0}, v{T}")
        a(f"""v_xor_b32 v{T}, v{T}, v{T+1}
        v_lshl_add_u32 v{dst}, v{T}, 4, v{dst}
        v_and_b32 v{T}, 1, v0
        v_lshl_add_u32 v{dst}, v{T}, 3, v{dst}""")
    def setup(self):
        self.cur = None
    def select(self, key, stride, rowcode):
        if self.cur == key: return
        a = self.a; T = self.TMP
        a(f"""v_lshrrev_b32 v{T}, 4, v0                  ; j
        v_mul_u32_u24 v{self.V4[1]}, {stride}, v{T}
        v_lshlrev_b32 v{T}, 1, v{T}
        v_and_b32 v{T+1}, 15, v0
        v_xor_b32 v{T}, v{T}, v{T+1}
        v_lshlrev_b32 v{T}, 4, v{T}
        v_add_u32 v{self.V4[0]}, v{self.V4[1]}, v{T}
        v_xor_b32 v{T}, 128, v{T}
        v_add_u32 v{self.V4[1]}, v{self.V4[1]}, v{T}
        v_lshrrev_b32 v{self.V1}, 1, v0
        v_mul_u32_u24 v{self.V1}, {stride}, v{self.V1}
        v_and_b32 v{T}, 1, v0
        v_lshl_add_u32 v{self.V1}, v{T}, 4, v{self.V1}""")
        a(rowcode)
        self.cur = key
    def dma_cu(self, tag, srd, stride, ks, lds):
        a, fl = self.a, self.opt.wflags
        a(f"s_mul_i32 s{sT1}, s3, {8 * stride}")
        a(f"s_add_u32 s{sT1}, s{sT1}, s{sROW}")
        for t in range(2):
            a(f"s_add_u32 m0, s{sW2K}, {lds + t * 1024}")
            a(f"s_add_u32 s{sT0}, s{sT1}, {(ks * 32 + 4 * t) * stride}")
            self.vm.issue(tag, f"buffer_load_dwordx4 v{self.V4[t]}, s[{srd}:{srd+3}], s{sT0} offen {fl} lds")
    def dma_wv(self, tag, srd, stride, ks, lds):
        a, fl = self.a, self.opt.wflags
        for t in range(8):
            a(f"s_add_u32 m0, s{sW9K}, {lds + t * 1024}")
            a(f"s_add_u32 s{sT0}, s{sROW}, {(ks * 32 + 4 * t) * stride}")
            self.vm.issue(tag, f"buffer_load_dwordx4 v{self.V4[t & 1]}, s[{srd}:{srd+3}], s{sT0} offen {fl} lds")
        a(f"s_add_u32 m0, s{sW9K}, {lds + 8192}")
        a(f"s_add_u32 s{sT0}, s{sROW}, {ks * 32 * stride + 256}")
        self.vm.issue(tag, f"buffer_load_dwordx4 v{self.V1}, s[{srd}:{srd+3}], s{sT0} offen {fl} lds")
    def dma_t8(self, srd, stride, ks, lds):
        a, fl = self.a, self.opt.wflags
        a(f"s_mov_b32 m0, {lds}")
        a(f"s_add_u32 s{sT0}, s{sROW}, {ks * 32 * stride + 256}")
        a(f"buffer_load_dwordx4 v{self.V1}, s[{srd}:{srd+3}], s{sT0} offen {fl} lds")
    def rd_cu(self, base_lds, imgs, dsts):
        a = self.a; VB = self.VB
        self.tr_lane_sw(VB[0], True)
        a(f"v_add_u32 v{VB[0]}, {base_lds}, v{VB[0]}")
        a(f"v_xor_b32 v{VB[1]}, 32, v{VB[0]}")
        a(f"v_xor_b32 v{VB[2]}, 128, v{VB[0]}")
        a(f"v_xor_b32 v{VB[3]}, 160, v{VB[0]}")
        n = 0
        for k, off in enumerate(imgs):
            for nt in range(2):
                for half in range(2):
                    a(f"ds_read_b64_tr_b16 {dsts(k, nt, half)}, v{VB[nt + 2 * half]} offset:{off + half * 1024}")
                    n += 1
                    if n % 12 == 0: a("s_waitcnt lgkmcnt(0)")
        a("s_waitcnt lgkmcnt(0)")
    def rd_wv(self, base_lds, ks):
        a = self.a; VB = self.VB
        self.tr_lane_sw(VB[0], False)
        a(f"s_add_u32 s{sT0}, s{sW9K}, {base_lds}")
        a(f"v_add_u32 v{VB[0]}, s{sT0}, v{VB[0]}")
        self.tr_lane(VB[1], 5)
        a(f"v_add_u32 v{VB[1]}, s{sT0}, v{VB[1]}")
        for nt in range(8):
            for half in range(2):
                t = VB[2 + half]
                a(f"v_xor_b32 v{t}, {nt * 32 ^ half * 128}, v{VB[0]}")
                a(f"ds_read_b64_tr_b16 {hs2(H_B[(ks, nt)], half)}, v{t} offset:{half * 1024}")
            if nt == 5: a("s_waitcnt lgkmcnt(0)")
        for half in range(2):
            a(f"ds_read_b64_tr_b16 {hs2(H_B[(ks, 8)], half)}, v{VB[1]} offset:{8192 + half * 128}")
        a("s_waitcnt lgkmcnt(0)")
    def select9(self, key, stride, rowcode):
        if self.cur == key: return
        a = self.a; T = self.TMP
        for j in range(3):
            d = self.V9[j]
            a(f"""s_lshl_b32 s{sT0}, s3, 6
            v_add_u32 v{T}, s{sT0}, v0
            v_add_u32 v{T}, {j * 256}, v{T}
            v_mul_u32_u24 v{d}, 3641, v{T}
            v_lshrrev_b32 v{d}, 16, v{d}
            v_mul_u32_u24 v{T+1}, 18, v{d}
            v_sub_u32 v{T}, v{T}, v{T+1}
            v_mul_u32_u24 v{d}, {stride}, v{d}
            v_lshl_add_u32 v{d}, v{T}, 4, v{d}""")
        a(rowcode)
        self.cur = key
    def dma9(self, tag, srd, off, lds):
        a, fl = self.a, self.opt.wflags
        a(f"s_add_u32 s{sT0}, s{sROW}, {off}")
        a(f"s_lshl_b32 s{sT1}, s3, 10")
        for j in range(2):
            a(f"s_add_u32 m0, s{sT1}, {lds + j * 4096}")
            self.vm.issue(tag, f"buffer_load_dwordx4 v{self.V9[j]}, s[{srd}:{srd+3}], s{sT0} offen {fl} lds")
        L = a.newlabel("Ld9")
        a("s_cmp_eq_u32 s3, 0")
        a(f"s_cbranch_scc0 {L}")
        a(f"s_mov_b32 m0, {lds + 8192}")
        a(f"buffer_load_dwordx4 v{self.V9[2]}, s[{srd}:{srd+3}], s{sT0} offen {fl} lds")
        a.label(L)
    def tr288(self, base_lds, wave_cols):
        a = self.a; T = self.TMP; VB = self.VB[0]
        a(f"""v_lshrrev_b32 v{T}, 4, v0
        v_bfe_u32 v{T+1}, v0, 2, 2
        v_lshl_add_u32 v{T}, v{T}, 3, v{T+1}
        v_mul_u32_u24 v{VB}, 288, v{T}
        v_and_b32 v{T}, 3, v0
        v_lshl_add_u32 v{VB}, v{T}, 3, v{VB}""")
        if wave_cols:
            a(f"s_lshl_b32 s{sT0}, s3, 6")
            a(f"s_add_u32 s{sT0}, s{sT0}, {base_lds}")
            a(f"v_add_u32 v{VB}, s{sT0}, v{VB}")
        else:
            a(f"v_add_u32 v{VB}, {base_lds}, v{VB}")
        return VB
    def convert_cu(self, home):
        a = self.a
        for ks0, n in ((0, 3), (3, 4)):
            self.rd_cu(home, [(ks0 + k) * 8192 for k in range(n)],
                       lambda k, nt, half: f"v[{VW + (k*2+nt)*4 + 2*half}:{VW + (k*2+nt)*4 + 2*half + 1}]")
            a("s_barrier")
            VB = self.VB[0]
            a(f"v_add_u32 v{VB}, {home}, v{VHB}")
            for k in range(n):
                for nt in range(2):
                    r = VW + (k * 2 + nt) * 4
                    a(f"ds_write_b128 v{VB}, v[{r}:{r+3}] offset:{(ks0 + k) * 8192 + nt * 1024}")
            a("s_waitcnt lgkmcnt(0)")
    def convert_t8(self, home, k0, n):
        a = self.a; VB, VC = self.VB[0], self.VB[1]
        self.tr_lane(VB, 5)
        a(f"v_add_u32 v{VB}, {home}, v{VB}")
        a(f"v_lshlrev_b32 v{VC}, 4, v0")
        a(f"v_add_u32 v{VC}, {home}, v{VC}")
        for k in range(n):
            for half in range(2):
                a(f"ds_read_b64_tr_b16 v[{VW + k*4 + 2*half}:{VW + k*4 + 2*half + 1}], v{VB} offset:{(k0 + k) * 1024 + half * 128}")
        a("s_waitcnt lgkmcnt(0)")
        for k in range(n):
            a(f"ds_write_b128 v{VC}, v[{VW + k*4}:{VW + k*4 + 3}] offset:{(k0 + k) * 1024}")
        a("s_waitcnt lgkmcnt(0)")

A0, A1 = VW, VW + 4
AT = [VW + 8 + 4 * k for k in range(4)]
WT = [VW + 24, VW + 28, VW + 32]
A2 = VW + 8

def gemv_order(nreg):
    R = list(range(nreg)); L = list(range(nreg, 18))
    seq = []
    while L:
        seq.append(R.pop(0)); seq.append(L.pop(0))
    return seq + R

TRA = VW + 20
def gemv_pre(a, lq, nreg, hreg):
    if nreg >= 18: return
    if hreg == VHD:
        a(f"v_mov_b32 v{TRA}, v{VHD}")
        a(f"v_xor_b32 v{TRA+1}, 32, v{VHD}")
        a(f"v_xor_b32 v{TRA+2}, 128, v{VHD}")
        a(f"v_xor_b32 v{TRA+3}, 160, v{VHD}")
    slots = [(ks, nt) for ks in range(nreg, 18) for nt in range(2)]
    for j in range(3): w_issue(a, lq, slots[j], j, nreg, hreg)
def w_issue(a, lq, sl, j, nreg, hreg):
    ks, nt = sl; t = WT[j % 3]
    if hreg == VHD:
        for half in range(2):
            lq.issue(("w", ks, nt), f"ds_read_b64_tr_b16 v[{t+2*half}:{t+2*half+1}], v{TRA + nt + 2*half} offset:{(ks - nreg)*8192 + half*1024}")
    else:
        lq.issue(("w", ks, nt), f"ds_read_b128 v[{t}:{t+3}], v{hreg} offset:{(ks - nreg)*8192 + nt*1024}")

def gemv18(a, lq, homes, nreg, hreg, act, tail=None):
    seq = gemv_order(nreg)
    slots = [(ks, nt) for ks in range(nreg, 18) for nt in range(2)]
    sj = {s: j for j, s in enumerate(slots)}
    nxt = 3
    NA = 3 if hreg == VHD else 4
    def act_issue(p):
        ks = seq[p]; t = AT[p % NA]
        lq.issue(("a", p), f"ds_read_b128 v[{t}:{t+3}], v{VACT} offset:{act - L_MISC + ks*64}")
    for p in range(NA - 1): act_issue(p)
    tail_done = tail is None
    for p, ks in enumerate(seq):
        if p + NA - 1 < 18: act_issue(p + NA - 1)
        lq.need(("a", p))
        At = f"v[{AT[p % NA]}:{AT[p % NA]+3}]"
        for nt, Ac in ((0, A0), (1, A1)):
            if ks >= nreg:
                lq.need(("w", ks, nt)); t = WT[sj[(ks, nt)] % 3]; B = f"v[{t}:{t+3}]"
            else:
                B = hs(homes[(ks, nt)])
            C = "0" if p == 0 else f"v[{Ac}:{Ac+3}]"
            a(f"v_mfma_f32_16x16x32_bf16 v[{Ac}:{Ac+3}], {At}, {B}, {C}")
            if ks >= nreg and nxt < len(slots):
                w_issue(a, lq, slots[nxt], nxt, nreg, hreg); nxt += 1
        if not tail_done and nxt >= len(slots) and (ks == 17 or (nreg >= 18 and p == 12)):
            tail(); tail_done = True
    if not tail_done: tail()

def gemv_opt(a, lq, act, home):
    L = a.newlabel("Lg3")
    a(f"s_cmp_eq_u32 s3, 3")
    a(f"s_cbranch_scc0 {L}")
    lq.drain()
    ATo = [AT[1], AT[2]]
    VH = AT[3]
    a(f"v_lshlrev_b32 v{VH}, 4, v0")
    a(f"v_add_u32 v{VH}, {home}, v{VH}")
    if home == H_D8:
        a(f"""v_lshrrev_b32 v{VH+1}, 4, v0
        v_bfe_u32 v{VH+2}, v0, 2, 2
        v_lshl_add_u32 v{VH+1}, v{VH+1}, 3, v{VH+2}
        v_lshlrev_b32 v{VH+1}, 5, v{VH+1}
        v_and_b32 v{VH+2}, 3, v0
        v_lshl_add_u32 v{VH+1}, v{VH+2}, 3, v{VH+1}
        v_add_u32 v{VH+1}, {home}, v{VH+1}""")
    def o_w(ks):
        t = WT[ks % 3]
        if home == H_D8 and ks >= NE_REG:
            for half in range(2):
                lq.issue(("o", ks), f"ds_read_b64_tr_b16 v[{t+2*half}:{t+2*half+1}], v{VH+1} offset:{ks*1024 + half*128}")
        else:
            lq.issue(("o", ks), f"ds_read_b128 v[{t}:{t+3}], v{VH} offset:{ks*1024}")
    def o_a(ks):
        t = ATo[ks % 2]
        lq.issue(("oa", ks), f"ds_read_b128 v[{t}:{t+3}], v{VACT} offset:{act - L_MISC + ks*64}")
    o_w(0); o_a(0); o_w(1); o_a(1); o_w(2)
    for ks in range(18):
        lq.need(("o", ks)); lq.need(("oa", ks))
        t = WT[ks % 3]; ta = ATo[ks % 2]
        C = "0" if ks == 0 else f"v[{A2}:{A2+3}]"
        a(f"v_mfma_f32_16x16x32_bf16 v[{A2}:{A2+3}], v[{ta}:{ta+3}], v[{t}:{t+3}], {C}")
        if ks + 2 < 18: o_a(ks + 2)
        if ks + 3 < 18: o_w(ks + 3)
    a.label(L)

def pack_pairs(a, src, dst, t1):
    a(f"v_mov_b32_dpp v{dst}, v{src} quad_perm:[0,0,2,2] row_mask:0xf bank_mask:0xf")
    a(f"v_mov_b32_dpp v{t1}, v{src} quad_perm:[1,1,3,3] row_mask:0xf bank_mask:0xf")
    a(f"v_cvt_pk_bf16_f32 v{dst}, v{dst}, v{t1}")

def gather_vec(a, opt, nreg):
    G = VW
    for k in range(8): a(f"s_add_u32 s{sRL+k}, s{nreg}, {k*2304}")
    lanes_lt(a, 36)
    L, Lr, Lok = a.newlabel("Lgv"), a.newlabel("Lgr"), a.newlabel("Lgk")
    a(f"s_mov_b32 s{sCN}, 0")
    a.label(L)
    for k in range(8):
        a(f"buffer_load_dwordx4 v[{G+4*k}:{G+4*k+3}], v{VVEC}, s[{S_WS}:{S_WS+3}], s{sRL+k} offen sc1")
    a(f"s_add_u32 s{sCN}, s{sCN}, 1")
    a(f"s_cmp_ge_u32 s{sCN}, {opt.spin}")
    a("s_waitcnt vmcnt(0)")
    a(f"s_cbranch_scc1 {Lr} ;light")
    a(f"v_max_u32 v{G+32}, v{G}, v{G+28}")
    a(f"v_cmp_eq_u32 vcc, -1, v{G+32}")
    a(f"s_cbranch_vccnz {L}")
    a.label(Lr)
    for c in range(4):
        a(f"v_add_f32 v{G+c}, v{G+c}, v{G+4+c}")
        a(f"v_add_f32 v{G+8+c}, v{G+8+c}, v{G+12+c}")
        a(f"v_add_f32 v{G+16+c}, v{G+16+c}, v{G+20+c}")
        a(f"v_add_f32 v{G+24+c}, v{G+24+c}, v{G+28+c}")
    for c in range(4):
        a(f"v_add_f32 v{G+c}, v{G+c}, v{G+8+c}")
        a(f"v_add_f32 v{G+16+c}, v{G+16+c}, v{G+24+c}")
    for c in range(4): a(f"v_add_f32 v{G+c}, v{G+c}, v{G+16+c}")
    a(f"v_add_f32 v{G+4}, v{G}, v{G+1}")
    a(f"v_add_f32 v{G+5}, v{G+2}, v{G+3}")
    a(f"v_cmp_u_f32 vcc, v{G+4}, v{G+5}")
    a(f"s_cbranch_vccz {Lok}")
    a(f"s_cmp_lt_u32 s{sCN}, {opt.spin}")
    a(f"s_cbranch_scc1 {L}")
    a.label(Lok)
    for c in range(4): a(f"v_add_f32 v{VXR+c}, v{VXR+c}, v{G+c}")
    lanes_all(a)

def act_stats(a, act):
    S1, S2, T = VW, VW + 1, VW + 2
    a(f"v_mov_b32 v{S1}, 0")
    a(f"v_mov_b32 v{S2}, 0")
    a(f"v_lshrrev_b32 v{T+2}, 1, v{VVEC}")
    a(f"v_add_u32 v{T+2}, {act}, v{T+2}")
    lanes_lt(a, 36)
    a(f"""v_cvt_pk_bf16_f32 v{T}, v{VXR}, v{VXR+1}
    v_cvt_pk_bf16_f32 v{T+1}, v{VXR+2}, v{VXR+3}
    v_add_f32 v{S1}, v{VXR}, v{VXR+1}
    v_mul_f32 v{S2}, v{VXR}, v{VXR}
    ds_write_b64 v{T+2}, v[{T}:{T+1}]
    v_add_f32 v{T+3}, v{VXR+2}, v{VXR+3}
    v_fmac_f32 v{S2}, v{VXR+1}, v{VXR+1}
    v_add_f32 v{S1}, v{S1}, v{T+3}
    v_fmac_f32 v{S2}, v{VXR+2}, v{VXR+2}
    v_fmac_f32 v{S2}, v{VXR+3}, v{VXR+3}""")
    lanes_all(a)
    for sh in (8, 4, 2, 1):
        a(f"v_add_f32_dpp v{S1}, v{S1}, v{S1} row_ror:{sh} row_mask:0xf bank_mask:0xf")
        a(f"v_add_f32_dpp v{S2}, v{S2}, v{S2} row_ror:{sh} row_mask:0xf bank_mask:0xf")
    a(f"v_add_f32_dpp v{S1}, v{S1}, v{S1} row_bcast:15 row_mask:0xa bank_mask:0xf")
    a(f"v_add_f32_dpp v{S2}, v{S2}, v{S2} row_bcast:15 row_mask:0xa bank_mask:0xf")
    a(f"v_add_f32_dpp v{S1}, v{S1}, v{S1} row_bcast:31 row_mask:0xc bank_mask:0xf")
    a(f"v_add_f32_dpp v{S2}, v{S2}, v{S2} row_bcast:31 row_mask:0xc bank_mask:0xf")
    a(f"""v_lshrrev_b32 v{T}, 4, v0
    s_lshl_b32 s{sT0}, s3, 5
    s_add_u32 s{sT0}, s{sT0}, {L_ST}
    v_lshl_add_u32 v{T}, v{T}, 3, s{sT0}
    ds_write_b64 v{T}, v[{S1}:{S2}]""")

MU, RS = WT[0], WT[0] + 1
def stats_tail(a, lq):
    R = WT[1]
    a(f"v_mov_b32 v{WT[0]+2}, {L_ST}")
    for w in range(4):
        lq.issue(("st", w), f"ds_read_b64 v[{R+2*w}:{R+2*w+1}], v{WT[0]+2} offset:{w*32 + 24}")
    return R
def stats_fin(a, lq, R):
    lq.need(("st", 3))
    a(f"""v_add_f32 v{R}, v{R}, v{R+2}
    v_add_f32 v{R+1}, v{R+1}, v{R+3}
    v_add_f32 v{R+4}, v{R+4}, v{R+6}
    v_add_f32 v{R+5}, v{R+5}, v{R+7}
    v_add_f32 v{R}, v{R}, v{R+4}
    v_add_f32 v{R+1}, v{R+1}, v{R+5}
    v_mul_f32 v{MU}, {hex(f32(1.0/576))}, v{R}
    v_mul_f32 v{RS}, {hex(f32(1.0/576))}, v{R+1}
    v_fma_f32 v{RS}, -v{MU}, v{MU}, v{RS}
    v_max_f32 v{RS}, 0, v{RS}
    v_add_f32 v{RS}, {hex(f32(1e-5))}, v{RS}
    v_rsq_f32 v{RS}, v{RS}""")

def stage_B(a, opt, fm=lambda: None):
    G = VW; ST = VW + 16; T = VW + 18
    a(f"""s_lshl_b32 s{sT1}, s{sKQ}, 2
    s_add_u32 s{sT1}, s{sT1}, s3
    s_mul_i32 s{sT1}, s{sT1}, {8*A_REC}
    s_mul_i32 s{sT2}, s{sN}, {WS_A_CH}
    s_add_u32 s{sT1}, s{sT1}, s{sT2}""")
    VO, VS, VO3 = T, T + 1, T + 2
    a(f"""v_lshrrev_b32 v{VO}, 5, v0
    v_mul_u32_u24 v{VO}, {A_REC}, v{VO}
    v_and_b32 v{VS}, 31, v0
    v_lshlrev_b32 v{VO3}, 4, v{VS}
    v_add_u32 v{VO}, v{VO3}, v{VO}
    v_and_b32 v{VS}, 7, v0
    v_min_u32 v{VS}, 6, v{VS}
    v_mul_u32_u24 v{VS}, {A_REC}, v{VS}
    v_add_u32 v{VS}, 512, v{VS}""")
    M, Wt, Lw, F = T + 3, T + 4, T + 5, T + 6
    def loads():
        a(f"buffer_load_dwordx2 v[{ST}:{ST+1}], v{VS}, s[{S_WS}:{S_WS+3}], s{sT1} offen sc1")
        for k in range(3):
            a(f"buffer_load_dwordx4 v[{G+4*k}:{G+4*k+3}], v{VO}, s[{S_WS}:{S_WS+3}], s{sT1} offen offset:{2*k*A_REC} sc1")
        a(f"buffer_load_dwordx4 v[{G+12}:{G+15}], v{VO3}, s[{S_WS}:{S_WS+3}], s{sT1} offen offset:{6*A_REC} sc1")
    poll(a, opt, loads, lambda: sent_check(a, list(range(G, G + 16)) + [ST, ST + 1], M))
    fm()
    Lf = a.newlabel("Lflag")
    a(f"s_and_b32 s{sT0}, s{sN}, 1")
    a(f"s_or_b32 s{sT0}, s{sT0}, s{sI}")
    a(f"s_or_b32 s{sT0}, s{sT0}, s3")
    a(f"s_cmp_eq_u32 s{sT0}, 0")
    a(f"s_cbranch_scc0 {Lf}")
    a(f"v_mov_b32 v{M}, 1")
    a(f"s_lshl_b32 s{sT0}, s{sN}, 1")
    a(f"s_add_u32 s{sT0}, s{sT0}, {WS_FLAG}")
    a(f"v_mov_b32 v{Wt}, s{sT0}")
    a("s_mov_b64 exec, 1")
    a(f"buffer_store_dword v{M}, v{Wt}, s[{S_WS}:{S_WS+3}], 0 offen sc0 sc1")
    a("s_mov_b64 exec, -1")
    a.label(Lf)
    a(f"v_mov_b32 v{M}, v{ST}")
    for sh in (4, 2, 1):
        a(f"v_max_f32_dpp v{M}, v{M}, v{M} row_ror:{sh} row_mask:0xf bank_mask:0xf")
    a(f"""v_sub_f32 v{Wt}, v{ST}, v{M}
    v_exp_f32 v{Wt}, v{Wt}
    v_and_b32 v{Lw}, 7, v0
    v_cmp_eq_u32 vcc, 7, v{Lw}
    v_mov_b32 v{Lw}, 0
    v_cndmask_b32 v{Wt}, v{Wt}, v{Lw}, vcc
    v_mul_f32 v{Lw}, v{Wt}, v{ST+1}""")
    for sh in (4, 2, 1):
        a(f"v_add_f32_dpp v{Lw}, v{Lw}, v{Lw} row_ror:{sh} row_mask:0xf bank_mask:0xf")
    a(f"v_rcp_f32 v{Lw}, v{Lw}")
    a(f"v_mul_f32 v{Wt}, v{Wt}, v{Lw}")
    for s in range(7): a(f"v_readlane_b32 s{sRL+s}, v{Wt}, {s}")
    for k in range(4): a(f"v_mov_b32 v{F+k}, s{sRL+2*k}")
    for k in range(3):
        a(f"v_mov_b32 v{M}, s{sRL+2*k+1}")
        a(f"v_cndmask_b32 v{F+k}, v{F+k}, v{M}, s[{sHI}:{sHI+1}]")
    a(f"v_mov_b32 v{M}, 0")
    a(f"v_cndmask_b32 v{F+3}, v{F+3}, v{M}, s[{sHI}:{sHI+1}]")
    for c in range(4): a(f"v_mul_f32 v{G+c}, v{G+c}, v{F}")
    for k in range(1, 4):
        for c in range(4): a(f"v_fmac_f32 v{G+c}, v{G+4*k+c}, v{F+k}")
    for c in range(4): a(f"v_mov_b32 v{G+4+c}, v{G+c}")
    for c in range(4): a(f"v_permlane32_swap_b32 v{G+c}, v{G+4+c}")
    for c in range(4): a(f"v_add_f32 v{G+c}, v{G+c}, v{G+4+c}")
    a(f"v_cvt_pk_bf16_f32 v{G+8}, v{G}, v{G+1}")
    a(f"v_cvt_pk_bf16_f32 v{G+9}, v{G+2}, v{G+3}")
    a(f"""v_and_b32 v{M}, 31, v0
    s_lshl_b32 s{sT0}, s3, 8
    s_add_u32 s{sT0}, s{sT0}, {L_OACT}
    v_lshl_add_u32 v{M}, v{M}, 3, s{sT0}""")
    lanes_lt(a, 32)
    a(f"ds_write_b64 v{M}, v[{G+8}:{G+9}]")
    lanes_all(a)
    BT = VW
    a(f"s_sub_u32 s{sT0}, s{sT0}, {L_MISC}")
    a(f"v_add_u32 v{M}, s{sT0}, v{VACT}")
    a("s_waitcnt lgkmcnt(0)")
    for ks in range(4): a(f"ds_read_b128 v[{BT+4*ks}:{BT+4*ks+3}], v{M} offset:{ks*64}")
    fm()
    ACC = [VW + 16, VW + 20, VW + 24]
    OUT = VW + 28
    masks = [None, sG1, sG2, sG3]
    pend = []
    def fin(nt, ac):
        r, g = nt >> 2, nt & 3
        if g == 0: a(f"v_mov_b32 v{OUT+r}, v{ac}")
        else: a(f"v_cndmask_b32 v{OUT+r}, v{OUT+r}, v{ac}, s[{masks[g]}:{masks[g]+1}]")
    for grp in range(3):
        for ks in range(4):
            if grp == 0: a(f"s_waitcnt lgkmcnt({3-ks})")
            for j in range(3):
                nt = grp * 3 + j; ac = ACC[j]
                C = "0" if ks == 0 else f"v[{ac}:{ac+3}]"
                a(f"v_mfma_f32_16x16x32_bf16 v[{ac}:{ac+3}], v[{BT+4*ks}:{BT+4*ks+3}], {hs(H_B[(ks, nt)])}, {C}")
        for j in range(3): fin(grp * 3 + j, ACC[j])
    fm()
    a(f"""s_mul_i32 s{sT0}, s3, 576
    s_add_u32 s{sT0}, s{sT0}, {L_RED}
    v_lshl_add_u32 v{M}, v0, 2, s{sT0}
    ds_write_b32 v{M}, v{OUT}
    ds_write_b32 v{M}, v{OUT+1} offset:256""")
    lanes_lt(a, 16)
    a(f"ds_write_b32 v{M}, v{OUT+2} offset:512")
    lanes_all(a)
    a("s_waitcnt lgkmcnt(0)")
    a("s_barrier")
    L = a.newlabel("Lbp")
    a("s_cmp_eq_u32 s3, 0")
    a(f"s_cbranch_scc0 {L}")
    a(f"v_lshlrev_b32 v{M}, 4, v0")
    a(f"v_add_u32 v{M+1}, {L_RED}, v{M}")
    for w in range(4): a(f"ds_read_b128 v[{BT+4*w}:{BT+4*w+3}], v{M+1} offset:{w*576}")
    a(f"""s_mul_i32 s{sT0}, s{sN}, {WS_PV_CH}
    s_mul_i32 s{sT1}, s{sKQ}, 2304
    s_add_u32 s{sT0}, s{sT0}, s{sT1}
    s_mul_i32 s{sT1}, s{sNQ}, 576
    s_add_u32 s{sT0}, s{sT0}, s{sT1}
    s_add_u32 s{sT0}, s{sT0}, {WS_PB}""")
    a("s_waitcnt lgkmcnt(0)")
    for c in range(4):
        a(f"v_add_f32 v{BT+c}, v{BT+c}, v{BT+4+c}")
        a(f"v_add_f32 v{BT+8+c}, v{BT+8+c}, v{BT+12+c}")
    for c in range(4): a(f"v_add_f32 v{BT+c}, v{BT+c}, v{BT+8+c}")
    lanes_lt(a, 36)
    pub_flags(a, lambda fl: a(f"buffer_store_dwordx4 v[{BT}:{BT+3}], v{M}, s[{S_WS}:{S_WS+3}], s{sT0} offen {fl}"))
    lanes_all(a)
    a.label(L)

def load_x_lds(a, bcode):
    a(bcode)
    T = VW
    a(f"v_lshrrev_b32 v{T+2}, 1, v{VVEC}")
    a(f"s_add_u32 s{sT0}, s{sT0}, {L_XIN}")
    a(f"v_add_u32 v{T+2}, s{sT0}, v{T+2}")
    a(f"ds_read_b64 v[{T}:{T+1}], v{T+2}")
    a("s_waitcnt lgkmcnt(0)")
    a(f"""v_lshlrev_b32 v{VXR}, 16, v{T}
    v_and_b32 v{VXR+1}, 0xffff0000, v{T}
    v_lshlrev_b32 v{VXR+2}, 16, v{T+1}
    v_and_b32 v{VXR+3}, 0xffff0000, v{T+1}""")

def fill_ones(a, act):
    T = VW
    a(f"""v_mov_b32 v{T}, 0x3f803f80
    v_mov_b32 v{T+1}, 0x3f803f80
    v_lshrrev_b32 v{T+2}, 1, v{VVEC}
    v_add_u32 v{T+2}, {act}, v{T+2}""")
    lanes_lt(a, 36)
    a(f"ds_write_b64 v{T+2}, v[{T}:{T+1}]")
    lanes_all(a)
    a("s_waitcnt lgkmcnt(0)")

def select_tiles(a, dst, n3):
    a(f"v_mov_b32 v{dst}, v{A0}")
    a(f"v_cndmask_b32 v{dst}, v{dst}, v{A1}, s[{sG1}:{sG1+1}]")
    if n3: a(f"v_cndmask_b32 v{dst}, v{dst}, v{A2}, s[{sG2}:{sG2+1}]")

def chain(a, opt, st):
    a(f"""s_lshr_b32 s{sI}, s2, 3
    s_lshr_b32 s{sKQ}, s{sI}, 2
    s_and_b32 s{sNQ}, s{sI}, 3""")
    srd(a, S_WQ, P_WQ, 576*4096*2)
    srd(a, S_WO, P_WO, 4096*576*2)
    srd(a, S_W1, P_W1, 576*4608*2)
    srd(a, S_W2, P_W2, 4608*576*2)
    srd(a, S_X, P_X, 2304)
    srd(a, S_B1, P_B1, 9216)
    srd(a, S_B2, P_B2, 1152)
    srd(a, S_OUT, P_OUT, 2304)
    a(f"""s_mov_b32 s{sG1}, 0xffff0000
    s_mov_b32 s{sG1+1}, 0
    s_mov_b32 s{sG2}, 0
    s_mov_b32 s{sG2+1}, 0x0000ffff
    s_mov_b32 s{sG3}, 0
    s_mov_b32 s{sG3+1}, 0xffff0000
    s_mov_b32 s{sHI}, 0
    s_mov_b32 s{sHI+1}, -1
    s_lshl_b32 s{sW2K}, s3, 11
    s_mul_i32 s{sW9K}, s3, 9216""")
    if opt.stamps:
        for k in range(18): a(f"s_mov_b32 s{84+k}, 0")
    if opt.initmark:
        a("s_memrealtime s[82:83]")
        a("s_waitcnt lgkmcnt(0)")
        a("s_mov_b32 s101, s82")
    vm = VM(a)
    sg = Stager(a, opt, vm)
    T = VW
    if opt.cpf: code_prefetch(a, "L_chain_rest", "L_exit", 4, VW + 34, 252, 1, sb=70, dk="a")
    a.label("L_chain_rest")
    a(f"""s_mul_i32 s{sT0}, s3, 576
    v_lshl_add_u32 v{VVEC}, v0, 4, s{sT0}        ; (144w+4l)*4
    v_lshrrev_b32 v{T}, 4, v0
    v_lshlrev_b32 v{VACT}, 4, v{T}
    v_add_u32 v{VACT}, {L_MISC}, v{VACT}
    v_lshl_add_u32 v{VHB}, v0, 4, s{sW2K}""")
    sg.tr_lane_sw(VHD, True)
    a(f"v_add_u32 v{VHD}, {H_DL}, v{VHD}")
    erow = f"s_lshl_b32 s{sROW}, s{sI}, 8"
    brow = f"""s_lshl_b32 s{sROW}, s{sKQ}, 2
    s_add_u32 s{sROW}, s{sROW}, s3
    s_mul_i32 s{sROW}, s{sROW}, {128*1152}
    s_mul_i32 s{sT0}, s{sNQ}, 288
    s_add_u32 s{sROW}, s{sROW}, s{sT0}"""
    crow = f"s_mul_i32 s{sROW}, s{sI}, 288"
    drow = f"""s_mul_i32 s{sROW}, s{sKQ}, {576*1152}
    s_mul_i32 s{sT0}, s{sNQ}, 288
    s_add_u32 s{sROW}, s{sROW}, s{sT0}"""
    MAT = {"E": (S_WQ, 8192, erow, H_E), "C": (S_W1, 9216, crow, H_C), "D": (S_W2, 1152, drow, H_D), "B": (S_WO, 1152, brow, H_B)}
    brow = f"""s_mul_i32 s{sROW}, s{sKQ}, {4*128*1152}
    s_mul_i32 s{sT0}, s{sNQ}, 288
    s_add_u32 s{sROW}, s{sROW}, s{sT0}"""
    MAT["B"] = (S_WO, 1152, brow, H_B)
    order = [("B", ks, w) for ks in range(4) for w in range(4)] + [("C", k, None) for k in range(18)] + [("D", k, None) for k in range(NE_REG)]
    SLOT = [56 * 1024 + k * 9216 for k in range(6)] + [112 * 1024, 121 * 1024, 130 * 1024, 139 * 1024]
    LAST = [10**6] * 6 + [33, 42, 15, 24]
    ring = {"next": 0, "slot_of": {}, "free": list(range(10))}
    VTCH = VW + 15
    touched = [0]
    def touch_setup():
        a(f"""v_min_u32 v{VTCH}, 17, v0
        s_mul_i32 s{sT0}, s3, 18
        v_add_u32 v{VTCH}, s{sT0}, v{VTCH}
        v_lshlrev_b32 v{VTCH}, 7, v{VTCH}""")
    def touch(upto):
        if not opt.touch: return
        first = True
        while touched[0] < min(upto, len(order)):
            if first: touch_setup(); first = False
            (m, ks, w) = order[touched[0]]
            srd_ = MAT[m][0]
            if m == "C":
                a(f"s_mul_i32 s{sT0}, s{sI}, 9216")
                a(f"s_add_u32 s{sT0}, s{sT0}, {ks * 32 * 9216}")
            else:
                base_rows = (w * 128 if m == "B" else 0) + ks * 32
                a(f"s_mul_i32 s{sT0}, s{sKQ}, {(512 if m == 'B' else 576) * 1152}")
                a(f"s_mul_i32 s{sT1}, s{sNQ}, 9216")
                a(f"s_add_u32 s{sT0}, s{sT0}, s{sT1}")
                a(f"s_add_u32 s{sT0}, s{sT0}, {base_rows * 1152}")
            vm.issue("touch", f"buffer_load_dword a255, v{VTCH}, s[{srd_}:{srd_+3}], s{sT0} offen {opt.tflags}")
            touched[0] += 1
    def issue_images():
        while ring["next"] < len(order):
            j = ring["next"]
            cand = [sl for sl in ring["free"] if j <= LAST[sl]]
            if not cand: return
            sl = cand[-1] if LAST[cand[-1]] < 10**6 else cand[0]
            restricted = [c for c in cand if LAST[c] < 10**6]
            sl = restricted[0] if restricted else cand[0]
            ring["free"].remove(sl); ring["slot_of"][j] = sl
            (m, ks, w) = order[j]
            srd_, stride, rowc, _ = MAT[m]
            sg.select9(m, stride, rowc)
            off = (ks * 32 + (w * 128 if w is not None else 0)) * stride
            sg.dma9(("i", j), srd_, off, SLOT[sl])
            ring["next"] += 1
            touch(ring["next"] + opt.touch)
    def step(j):
        if j >= len(order): return
        vm.wait(("i", j))
        a("s_barrier")
        if j >= 1:
            ring["free"].append(ring["slot_of"][j - 1])
            issue_images()
        base = SLOT[ring["slot_of"][j]]
        (m, ks, w) = order[j]
        if m == "B":
            L = a.newlabel("Lcb")
            a(f"s_cmp_eq_u32 s3, {w}")
            a(f"s_cbranch_scc0 {L}")
            VB = sg.tr288(base, False)
            for nt in range(9):
                for half in range(2):
                    a(f"ds_read_b64_tr_b16 {hs2(H_B[(ks, nt)], half)}, v{VB} offset:{nt * 32 + half * 1152}")
                if nt == 5: a("s_waitcnt lgkmcnt(0)")
            a.label(L)
        else:
            VB = sg.tr288(base, True)
            H = MAT[m][3]
            for nt in range(2):
                for half in range(2):
                    a(f"ds_read_b64_tr_b16 {hs2(H[(ks, nt)], half)}, v{VB} offset:{nt * 32 + half * 1152}")
            L = a.newlabel("Lc8")
            a("s_cmp_eq_u32 s3, 3")
            a(f"s_cbranch_scc0 {L}")
            for half in range(2):
                a(f"ds_read_b64_tr_b16 v[{VW + 2*half}:{VW + 2*half + 1}], v{VB} offset:{64 + half * 1152}")
            a(f"v_lshlrev_b32 v{VW+4}, 4, v0")
            a(f"v_add_u32 v{VW+4}, {(H_C8 if m == 'C' else H_D8) + ks * 1024}, v{VW+4}")
            a("s_waitcnt lgkmcnt(0)")
            a(f"ds_write_b128 v{VW+4}, v[{VW}:{VW+3}]")
            a.label(L)
        a("s_waitcnt lgkmcnt(0)")
        if opt.initmark == 2 and j % 3 == 2 and j // 3 < 14:
            a("s_memrealtime s[82:83]"); a("s_waitcnt lgkmcnt(0)"); a(f"s_mov_b32 s{86+j//3}, s82")
    a(f"""v_mov_b32 v{T+4}, -1
    v_mov_b32 v{T+5}, -1
    v_mov_b32 v{T+6}, -1
    v_mov_b32 v{T+7}, -1
    v_lshlrev_b32 v{T+3}, 4, v0
    s_lshl_b32 s{sT0}, s3, 13
    s_lshl_b32 s{sT1}, s{sI}, 8
    s_add_u32 s{sT0}, s{sT0}, s{sT1}
    s_add_u32 s{sT0}, s{sT0}, {WS_Q}""")
    lanes_lt(a, 16)
    vm.issue("arm", f"buffer_store_dwordx4 v[{T+4}:{T+7}], v{T+3}, s[{S_WS}:{S_WS+3}], s{sT0} offen sc0 sc1")
    a(f"""s_mul_i32 s{sT0}, s3, {WS_PV_CH}
    s_mul_i32 s{sT1}, s{sKQ}, 2304
    s_add_u32 s{sT0}, s{sT0}, s{sT1}
    s_mul_i32 s{sT1}, s{sNQ}, 576
    s_add_u32 s{sT0}, s{sT0}, s{sT1}
    s_add_u32 s{sT1}, s{sT0}, {WS_PD}
    s_add_u32 s{sT0}, s{sT0}, {WS_PB}""")
    lanes_lt(a, 36)
    vm.issue("arm", f"buffer_store_dwordx4 v[{T+4}:{T+7}], v{T+3}, s[{S_WS}:{S_WS+3}], s{sT0} offen sc0 sc1")
    vm.issue("arm", f"buffer_store_dwordx4 v[{T+4}:{T+7}], v{T+3}, s[{S_WS}:{S_WS+3}], s{sT1} offen sc0 sc1")
    a(f"v_lshrrev_b32 v{T+8}, 1, v{VVEC}")
    vm.issue("small", f"buffer_load_dwordx2 v[{T+10}:{T+11}], v{T+8}, s[{S_X}:{S_X+3}], 0 offen")
    vm.issue("small", f"buffer_load_dwordx2 v[{T+12}:{T+13}], v{T+8}, s[{S_X}:{S_X+3}], 0 offen offset:1152")
    a(f"""s_mul_i32 s{sT0}, s3, {WS_H_CH}
    s_mul_i32 s{sT1}, s{sI}, 288
    s_add_u32 s{sT0}, s{sT0}, s{sT1}
    s_add_u32 s{sT0}, s{sT0}, {WS_H}""")
    lanes_lt(a, 18)
    vm.issue("arm", f"buffer_store_dwordx4 v[{T+4}:{T+7}], v{T+3}, s[{S_WS}:{S_WS+3}], s{sT0} offen sc0 sc1")
    a(f"s_lshl_b32 s{sT0}, s{sI}, 7")
    a(f"s_add_u32 s{sT0}, s{sT0}, {WS_FLAG}")
    lanes_lt(a, 1)
    vm.issue("arm", f"buffer_store_dwordx4 v[{T+4}:{T+7}], v{T+3}, s[{S_WS}:{S_WS+3}], s{sT0} offen sc0 sc1")
    lanes_all(a)
    a(f"""s_mul_i32 s{sT0}, s{sI}, 288
    s_lshl_b32 s{sT1}, s3, 6
    s_add_u32 s{sT0}, s{sT0}, s{sT1}
    v_lshlrev_b32 v{T+9}, 1, v0""")
    vm.issue("small", f"buffer_load_ushort v{VBB}, v{T+9}, s[{S_B1}:{S_B1+3}], s{sT0} offen")
    a(f"""s_mul_i32 s{sT0}, s{sNQ}, 288
    s_add_u32 s{sT0}, s{sT0}, s{sT1}""")
    vm.issue("small", f"buffer_load_ushort v{T+14}, v{T+9}, s[{S_B2}:{S_B2+3}], s{sT0} offen")
    sg.select("E", 8192, erow)
    for ks in range(NE_REG):
        sg.dma_cu("ereg", S_WQ, 8192, ks, 56 * 1024 + ks * 8192)
    for ks in range(NE_REG, 18):
        sg.dma_cu("ehome", S_WQ, 8192, ks, H_EL + (ks - NE_REG) * 8192)
    touch(10)
    vm.wait("small")
    a(f"""v_lshlrev_b32 v{VBB}, 16, v{VBB}
    v_mov_b32 v{T+9}, 0
    s_cmp_eq_u32 s{sKQ}, 0
    s_cselect_b64 vcc, -1, 0
    v_cndmask_b32 v{T+14}, v{T+9}, v{T+14}, vcc
    v_or_b32 v{VBB}, v{VBB}, v{T+14}
    v_add_u32 v{T+8}, {L_XIN}, v{T+8}""")
    lanes_lt(a, 36)
    a(f"ds_write_b64 v{T+8}, v[{T+10}:{T+11}]")
    a(f"ds_write_b64 v{T+8}, v[{T+12}:{T+13}] offset:1152")
    lanes_all(a)
    fill_ones(a, L_ACTA)
    a("s_barrier")
    L = a.newlabel("Lci")
    a("s_cmp_eq_u32 s3, 0")
    a(f"s_cbranch_scc0 {L}")
    a(f"""s_getreg_b32 s{sT0}, hwreg(HW_REG_XCC_ID)
    s_and_b32 s{sT0}, s{sT0}, 7
    s_lshl_b32 s{sT0}, s{sT0}, 3
    s_lshl_b64 s[{sRL}:{sRL+1}], 1, s{sT0}
    v_mov_b32 v{T}, s{sRL}
    v_mov_b32 v{T+1}, s{sRL+1}
    v_mov_b32 v{T+2}, 128
    s_mov_b64 exec, 1
    buffer_atomic_add_x2 v[{T}:{T+1}], v{T+2}, s[{S_DBG}:{S_DBG+3}], 0 offen sc1
    s_mov_b64 exec, -1""")
    a.label(L)
    vm.wait("ereg")
    a("s_barrier")
    for k0, n in ((0, 6), (6, 5)):
        sg.rd_cu(56 * 1024 + k0 * 8192, [k * 8192 for k in range(n)], lambda k, nt, half, k0=k0: hs2(H_E[(k0 + k, nt)], half))
    a("s_barrier")
    sg.setup()
    issue_images()
    vm.wait("ehome")
    a("s_barrier")
    sg.convert_cu(H_EL)
    a("s_barrier")
    sg.setup()
    for j in range(0, 4): step(j)
    lq = LQ(a)
    gemv_pre(a, lq, NE_REG, VHB)
    gemv18(a, lq, H_E, NE_REG, VHB, L_ACTA)
    select_tiles(a, VCSE, False)
    if opt.stamps != 3: st.mark()
    sg.setup()
    for j in range(4, 8): step(j)
    a(f"s_mov_b32 s{sIT}, 0")
    a("s_barrier")
    a("s_branch L_q1")
    a.label("L_citer")
    a(f"s_sub_u32 s{sN}, s{sIT}, 2")
    Lx = a.newlabel("Lx")
    a(f"s_bitcmp1_b32 s{sN}, 0")
    a(f"s_cbranch_scc1 {Lx}")
    load_x_lds(a, f"s_mul_i32 s{sT0}, s{sN}, 576")
    a.label(Lx)
    if opt.pretouch:
        Lpt = a.newlabel("Lpt")
        a(f"s_cmp_eq_u32 s3, 1")
        a(f"s_cbranch_scc0 {Lpt}")
        D_, O_ = VW + 35, VW + 34
        for (base, ch, nlines) in ((WS_PB, WS_PV_CH, 144), (WS_PD, WS_PV_CH, 144), (WS_H, WS_H_CH, 72)):
            a(f"s_mul_i32 s{sT0}, s{sN}, {ch}")
            a(f"s_add_u32 s{sT0}, s{sT0}, {base}")
            for k in range((nlines + 63) // 64):
                a(f"v_add_u32 v{O_}, {64*k}, v0")
                a(f"v_min_u32 v{O_}, {nlines-1}, v{O_}")
                a(f"v_lshlrev_b32 v{O_}, 7, v{O_}")
                a(f"buffer_load_dword v{D_}, v{O_}, s[{S_WS}:{S_WS+3}], s{sT0} offen sc1")
        a.label(Lpt)
    fine = opt.stamps == 3
    fm = (lambda: st.mark_if(sN, 2)) if fine else (lambda: None)
    if fine:
        class _N:
            def mark(self, *x): fm()
        stc = _N()
    else: stc = st
    stage_B(a, opt, fm)
    stc.mark(sN, 4)
    a(f"""s_mul_i32 s{sT2}, s{sN}, {WS_PV_CH}
    s_add_u32 s{sT2}, s{sT2}, {WS_PB}""")
    gather_vec(a, opt, sT2)
    fm()
    act_stats(a, L_ACTA)
    a("s_waitcnt lgkmcnt(0)")
    a("s_barrier")
    fm()
    lq = LQ(a)
    R = [None]
    def tl(): R[0] = stats_tail(a, lq)
    gemv18(a, lq, H_C, 18, None, L_ACTA, tail=tl)
    stats_fin(a, lq, R[0])
    a(f"v_readfirstlane_b32 s{sRL}, v{MU}")
    a(f"v_readfirstlane_b32 s{sRL+1}, v{RS}")
    gemv_opt(a, lq, L_ACTA, H_C8)
    fm()
    Hv, H2, H3 = AT[1], AT[1] + 1, AT[1] + 2
    select_tiles(a, Hv, True)
    k1 = -2.0 * math.sqrt(2.0 / math.pi) * math.log2(math.e)
    a(f"""v_mul_f32 v{H2}, s{sRL}, v{VCSC}
    v_and_b32 v{H3}, 0xffff0000, v{VBB}
    v_sub_f32 v{Hv}, v{Hv}, v{H2}
    v_fma_f32 v{Hv}, v{Hv}, s{sRL+1}, v{H3}
    v_mul_f32 v{H2}, v{Hv}, v{Hv}
    v_mov_b32 v{H3}, {hex(f32(k1))}
    v_mov_b32 v{H3+1}, {hex(f32(k1*0.044715))}
    v_fma_f32 v{H2}, v{H2}, v{H3+1}, v{H3}
    v_mul_f32 v{H2}, v{H2}, v{Hv}
    v_exp_f32 v{H2}, v{H2}
    v_add_f32 v{H2}, 1.0, v{H2}
    v_rcp_f32 v{H2}, v{H2}
    v_mul_f32 v{Hv}, v{Hv}, v{H2}""")
    pack_pairs(a, Hv, H2, H3)
    a(f"""s_mul_i32 s{sT0}, s{sN}, {WS_H_CH}
    s_mul_i32 s{sT1}, s{sI}, 288
    s_add_u32 s{sT0}, s{sT0}, s{sT1}
    s_lshl_b32 s{sT1}, s3, 6
    s_add_u32 s{sT0}, s{sT0}, s{sT1}
    s_add_u32 s{sT0}, s{sT0}, {WS_H}
    v_lshlrev_b32 v{H3}, 1, v0
    s_mov_b32 exec_lo, 0x55555555
    s_cmp_eq_u32 s3, 3
    s_cselect_b32 exec_hi, 0x5555, 0""")
    pub_flags(a, lambda fl: a(f"buffer_store_dword v{H2}, v{H3}, s[{S_WS}:{S_WS+3}], s{sT0} offen {fl}"))
    lanes_all(a)
    stc.mark(sN, 4)
    G = VW
    a(f"""s_mul_i32 s{sT1}, s{sN}, {WS_H_CH}
    s_mul_i32 s{sT0}, s{sKQ}, 1152
    s_add_u32 s{sT1}, s{sT1}, s{sT0}
    s_mul_i32 s{sT0}, s3, 288
    s_add_u32 s{sT1}, s{sT1}, s{sT0}
    s_add_u32 s{sT1}, s{sT1}, {WS_H}
    v_lshlrev_b32 v{G+5}, 4, v0
    s_add_u32 s{sT0}, s{sT0}, {L_ACTB}
    v_add_u32 v{G+6}, s{sT0}, v{G+5}""")
    lq = LQ(a)
    gemv_pre(a, lq, NE_REG, VHD)
    lanes_lt(a, 18)
    poll(a, opt, lambda: a(f"buffer_load_dwordx4 v[{G}:{G+3}], v{G+5}, s[{S_WS}:{S_WS+3}], s{sT1} offen sc1"),
         lambda: sent_check(a, range(G, G + 4), G + 4))
    a(f"ds_write_b128 v{G+6}, v[{G}:{G+3}]")
    lanes_all(a)
    fm()
    lq.drain(); a("s_waitcnt lgkmcnt(0)")
    a("s_barrier")
    gemv18(a, lq, H_D, NE_REG, VHD, L_ACTB)
    gemv_opt(a, lq, L_ACTB, H_D8)
    fm()
    select_tiles(a, Hv, True)
    a(f"v_lshlrev_b32 v{H2}, 16, v{VBB}")
    a(f"v_add_f32 v{Hv}, v{Hv}, v{H2}")
    a(f"""s_mul_i32 s{sT0}, s{sN}, {WS_PV_CH}
    s_mul_i32 s{sT1}, s{sKQ}, 2304
    s_add_u32 s{sT0}, s{sT0}, s{sT1}
    s_mul_i32 s{sT1}, s{sNQ}, 576
    s_add_u32 s{sT0}, s{sT0}, s{sT1}
    s_lshl_b32 s{sT1}, s3, 7
    s_add_u32 s{sT0}, s{sT0}, s{sT1}
    s_add_u32 s{sT0}, s{sT0}, {WS_PD}
    v_lshlrev_b32 v{H3}, 2, v0
    s_mov_b32 exec_lo, -1
    s_cmp_eq_u32 s3, 3
    s_cselect_b32 exec_hi, 0xffff, 0""")
    pub_flags(a, lambda fl: a(f"buffer_store_dword v{Hv}, v{H3}, s[{S_WS}:{S_WS+3}], s{sT0} offen {fl}"))
    lanes_all(a)
    stc.mark(sN, 4)
    a(f"""s_mul_i32 s{sT2}, s{sN}, {WS_PV_CH}
    s_add_u32 s{sT2}, s{sT2}, {WS_PD}""")
    gather_vec(a, opt, sT2)
    fm()
    Lodd = a.newlabel("Lodd")
    a(f"s_bitcmp1_b32 s{sN}, 0")
    a(f"s_cbranch_scc1 {Lodd}")
    a(f"s_lshr_b32 s{sT2}, s{sN}, 1")
    a(f"s_add_u32 s{sQI}, s{sT2}, 2")
    a("s_branch L_E")
    a.label("L_q1")
    load_x_lds(a, f"s_mul_i32 s{sT0}, s{sIT}, 1152")
    a(f"s_mov_b32 s{sQI}, s{sIT}")
    a.label("L_E")
    act_stats(a, L_ACTA)
    lq = LQ(a)
    gemv_pre(a, lq, NE_REG, VHB)
    lq.drain(); a("s_waitcnt lgkmcnt(0)")
    a("s_barrier")
    def tl2(): R[0] = stats_tail(a, lq)
    if fine: st.mark_if(sIT, 4)
    gemv18(a, lq, H_E, NE_REG, VHB, L_ACTA, tail=tl2)
    stats_fin(a, lq, R[0])
    if fine: st.mark_if(sIT, 4)
    select_tiles(a, Hv, False)
    a(f"""v_mul_f32 v{H2}, v{MU}, v{VCSE}
    v_sub_f32 v{Hv}, v{Hv}, v{H2}
    v_mul_f32 v{Hv}, v{Hv}, v{RS}""")
    pack_pairs(a, Hv, H2, H3)
    a(f"""s_lshl_b32 s{sT0}, s{sQI}, 13
    s_lshl_b32 s{sT1}, s{sI}, 8
    s_add_u32 s{sT0}, s{sT0}, s{sT1}
    s_lshl_b32 s{sT1}, s3, 6
    s_add_u32 s{sT0}, s{sT0}, s{sT1}
    s_add_u32 s{sT0}, s{sT0}, {WS_Q}
    v_lshlrev_b32 v{H3}, 1, v0
    s_mov_b32 exec_lo, 0x55555555
    s_mov_b32 exec_hi, 0
    buffer_store_dword v{H2}, v{H3}, s[{S_WS}:{S_WS+3}], s{sT0} offen sc0 sc1""")
    lanes_all(a)
    if fine: st.mark_if(sIT, 4)
    elif opt.initmark != 2: st.mark(sIT, 5)
    a(f"s_add_u32 s{sIT}, s{sIT}, 1")
    a(f"s_cmp_eq_u32 s{sIT}, 1")
    Lq = a.newlabel("Lq1b")
    a(f"s_cbranch_scc0 {Lq}")
    sg.setup()
    for j in range(8, 12): step(j)
    a("s_branch L_q1")
    a.label(Lq)
    a(f"s_cmp_eq_u32 s{sIT}, 2")
    a(f"s_cbranch_scc0 L_citer")
    sg.setup()
    for j in range(12, len(order)): step(j)
    a("s_barrier")
    sg.setup()
    a(f"v_mov_b32 v{T+3}, 128")
    a(f"v_mov_b32 v{T+7}, 0")
    vm.issue("cnt", f"buffer_load_dwordx2 v[{T+4}:{T+5}], v{T+3}, s[{S_DBG}:{S_DBG+3}], 0 offen sc1")
    vm.issue("cnt", f"buffer_load_dword v{T+6}, v{T+7}, s[{S_DBG}:{S_DBG+3}], 0 offen sc1")
    sg.select("D", 1152, drow)
    for ks in range(NE_REG, 18):
        sg.dma_cu("dhome", S_W2, 1152, ks, H_DL + (ks - NE_REG) * 8192)
    L3 = a.newlabel("Lo3")
    a(f"s_cmp_eq_u32 s3, 3")
    a(f"s_cbranch_scc0 {L3}")
    for ks in range(NE_REG, 18): sg.dma_t8(S_W2, 1152, ks, H_D8 + ks * 1024)
    a.label(L3)
    if opt.eflag:
        Lf = a.newlabel("Leflag")
        a(f"s_or_b32 s{sT0}, s{sI}, s3")
        a(f"s_cmp_eq_u32 s{sT0}, 0")
        a(f"s_cbranch_scc0 {Lf}")
        a(f"v_mov_b32 v{T+9}, 1")
        a(f"v_mov_b32 v{T+10}, {WS_FLAG}")
        a("s_mov_b64 exec, 1")
        a(f"buffer_store_dword v{T+9}, v{T+10}, s[{S_WS}:{S_WS+3}], 0 offen sc0 sc1")
        a("s_mov_b64 exec, -1")
        a.label(Lf)
    vm.wait("cnt")
    Lsp, Lok = a.newlabel("Lcs"), a.newlabel("Lco")
    a(f"s_mov_b32 s{sCN}, 0")
    a.label(Lsp)
    a(f"""v_sad_u8 v{T+8}, v{T+4}, 0, 0
    v_sad_u8 v{T+8}, v{T+5}, 0, v{T+8}
    v_readfirstlane_b32 s{sT0}, v{T+8}
    v_readfirstlane_b32 s{sT1}, v{T+6}
    s_cmp_ge_u32 s{sT0}, 32
    s_cselect_b32 s{sT0}, 1, 0
    s_cmp_ge_u32 s{sT1}, 224
    s_cselect_b32 s{sT0}, s{sT0}, 0
    s_cmp_eq_u32 s{sT0}, 1
    s_cbranch_scc1 {Lok}
    buffer_load_dwordx2 v[{T+4}:{T+5}], v{T+3}, s[{S_DBG}:{S_DBG+3}], 0 offen sc1
    buffer_load_dword v{T+6}, v{T+7}, s[{S_DBG}:{S_DBG+3}], 0 offen sc1
    s_waitcnt vmcnt(0)
    s_add_u32 s{sCN}, s{sCN}, 1
    s_cmp_lt_u32 s{sCN}, {opt.spin}
    s_cbranch_scc1 {Lsp}""")
    a.label(Lok)
    a(f"""v_readfirstlane_b32 s{sT0}, v{T+4}
    v_readfirstlane_b32 s{sT1}, v{T+5}
    s_or_b32 s{sT2}, s{sT0}, s{sT1}
    s_mov_b32 s{sFAST}, 0""")
    for sh in (0, 8, 16, 24):
        a(f"s_cmp_eq_u32 s{sT2}, {hex(32 << sh)}")
        a(f"s_cselect_b32 s{sFAST}, 1, s{sFAST}")
    a(f"s_min_u32 s{sT0}, s{sT0}, s{sT1}")
    a(f"s_cmp_eq_u32 s{sT0}, 0")
    a(f"s_cselect_b32 s{sFAST}, s{sFAST}, 0")
    if opt.safe: a(f"s_mov_b32 s{sFAST}, 0")
    fill_ones(a, L_ACTA)
    a("s_barrier")
    lq = LQ(a)
    gemv18(a, lq, H_C, 18, None, L_ACTA)
    gemv_opt(a, lq, L_ACTA, H_C8)
    select_tiles(a, VCSC, True)
    if opt.initmark:
        st.n = 1
        st.mark()
        st.dump(VW)
        a("s_branch L_exit")
    a("s_branch L_citer")
    a.label(Lodd)
    Lno = a.newlabel("Lno")
    a(f"s_cmp_eq_u32 s{sI}, 0")
    a(f"s_cbranch_scc0 {Lno}")
    a(f"v_cvt_pk_bf16_f32 v{VW}, v{VXR}, v{VXR+1}")
    a(f"v_cvt_pk_bf16_f32 v{VW+1}, v{VXR+2}, v{VXR+3}")
    a(f"v_lshrrev_b32 v{VW+2}, 1, v{VVEC}")
    a(f"s_lshr_b32 s{sT0}, s{sN}, 1")
    a(f"s_mul_i32 s{sT0}, s{sT0}, 1152")
    lanes_lt(a, 36)
    a(f"buffer_store_dwordx2 v[{VW}:{VW+1}], v{VW+2}, s[{S_OUT}:{S_OUT+3}], s{sT0} offen")
    lanes_all(a)
    a.label(Lno)
    a(f"s_add_u32 s{sIT}, s{sIT}, 1")
    a(f"s_cmp_lt_u32 s{sIT}, 6")
    a("s_cbranch_scc1 L_citer")
    st.dump(VW, [(0, 11, False), (1, 3, False), (15, 4, False), (3, 6, False), (17, 7, False), (4, 9, False), (12, 10, False), (13, 12, False)])
```

```python
import sys, argparse, math
from gen import *

A_REC = 640
WS_A = 0x0
WS_A_CH = 32 * 8 * A_REC
WS_Q = 0xA0000
WS_PB = 0xA8000
WS_PV_CH = 8 * 2304
WS_H = 0xBA000
WS_H_CH = 9216
WS_PD = 0xC3000
WS_FLAG = 0xD5000
WS_STAMP = 0x100000
WS_SIZE = 0x200000
SENT = -1
CSCALE = math.log2(math.e) / math.sqrt(128.0)
import struct
def f32(x): return struct.unpack("<I", struct.pack("<f", x))[0]

class Opt: pass

def srd(a, dst, lo, nbytes):
    a(f"""s_mov_b32 s{dst}, s{lo}
    s_and_b32 s{dst+1}, s{lo+1}, 0xffff
    s_mov_b32 s{dst+2}, {hex(nbytes)}
    s_mov_b32 s{dst+3}, 0x20000""")

P_X, P_K, P_V, P_WQ, P_WO, P_BX, P_W1, P_B1, P_W2, P_B2, P_OUT, P_DBG, P_WS = [56 + 2 * i for i in range(13)]
S_K, S_V, S_WS, S_DBG = 8, 12, 16, 20

class Stamp:
    def __init__(self, a, on, base=84, tmp=82, nmax=18): self.a, self.on, self.n, self.base, self.tmp, self.nmax = a, on, 0, base, tmp, nmax
    def mark(self, loop_reg=None, loop_n=1):
        if not self.on: return
        assert self.n + loop_n <= self.nmax, self.n
        self.a(f"s_memrealtime s[{self.tmp}:{self.tmp+1}]")
        self.a("s_waitcnt lgkmcnt(0)")
        if loop_reg is None:
            self.a(f"s_mov_b32 s{self.base+self.n}, s{self.tmp}")
        else:
            for k in range(loop_n):
                self.a(f"s_cmp_eq_u32 s{loop_reg}, {k}")
                self.a(f"s_cselect_b32 s{self.base+self.n+k}, s{self.tmp}, s{self.base+self.n+k}")
        self.n += loop_n
    def mark_if(self, reg, val):
        if not self.on: return
        assert self.n < self.nmax
        self.a(f"s_memrealtime s[{self.tmp}:{self.tmp+1}]")
        self.a("s_waitcnt lgkmcnt(0)")
        self.a(f"s_cmp_eq_u32 s{reg}, {val}")
        self.a(f"s_cselect_b32 s{self.base+self.n}, s{self.tmp}, s{self.base+self.n}")
        self.n += 1
    def dump(self, tmp, dbgmap=None):
        if not self.on: return
        a = self.a
        if self.on == 2 and dbgmap:
            a("s_mov_b64 exec, 1")
            for (slot, dw, inv) in dbgmap:
                if inv: a(f"s_not_b32 s{self.tmp}, s{self.base+slot}")
                else: a(f"s_mov_b32 s{self.tmp}, s{self.base+slot}")
                a(f"v_mov_b32 v{tmp+1}, s{self.tmp}")
                a(f"v_mov_b32 v{tmp}, {4*dw}")
                a(f"buffer_atomic_umax v{tmp+1}, v{tmp}, s[{S_DBG}:{S_DBG+3}], 0 offen sc1")
                a("s_waitcnt vmcnt(0)")
            a("s_mov_b64 exec, -1")
            self.n = 0
            return
        t = self.tmp
        a(f"""s_lshl_b32 s{t}, s2, 2
        s_add_u32 s{t}, s{t}, s3
        s_lshl_b32 s{t}, s{t}, 7
        s_add_u32 s{t}, s{t}, {WS_STAMP}
        v_mov_b32 v{tmp}, 0""")
        for k in range(self.nmax):
            a(f"v_mov_b32 v{tmp+1}, s{self.base+k}")
            a(f"buffer_store_dword v{tmp+1}, v{tmp}, s[{S_WS}:{S_WS+3}], s{t} offen offset:{4*k}")
        self.n = 0

def vm_wait(a, n):
    if n <= 62: a(f"s_waitcnt vmcnt({n})")

CAP = 60
def set_cap(c):
    global CAP
    CAP = c
NB_LDS = 5
NB = 19
G0 = [0, 1, 2, 11, 12, 13, 14, 15]
G1 = [3, 4, 5, 6, 7, 8, 9, 10]
G2 = [16, 17, 18]
UT = {}
def set_ny(ny):
    global G1, G2
    full = [3, 4, 5, 6, 7, 8, 9, 10]
    G1 = full[:ny]; G2 = full[ny:] + [16, 17, 18]
    UT.clear()
    for _u, _g in enumerate((G0, G1, G2)):
        for _t, _b in enumerate(_g): UT[_b] = (_u, _t)
set_ny(8)
sKB2 = 54
def k_home(rb, e, j):
    r = (rb * 4 + e * 2 + j) * 4
    return f"a[{r}:{r+3}]"
def v_home(rb, i):
    s = rb * 4 + i
    if s < 8: r = 224 + 4 * s; return f"a[{r}:{r+3}]"
    r = 64 + 4 * (s - 8); return f"v[{r}:{r+3}]"

VKOFF, VVOFF, VLDS, SH01, SH23, VPA, VPB = 1, 2, 3, 4, 5, 6, 8
VL, VT = 10, 11
VACC = 12
VQ = 16
VPK = 32
VD = 44
VLT = 56
sKB, sLDSB, sP, sT19, sOFF, sREC, sQB, sHEAD, sSPLIT, sCNT, sQL = 24, 25, 26, 27, 28, 30, 31, 32, 33, 34, 35
sEX = 46
sC = 55
sWSP, sDBGP = 4, 6
sQW = 36
sMSK = 56
MISC = 144 * 1024
M_ST = MISC
M_O = MISC + 256
M_STASH = MISC + 4096
M_Q = MISC + 8192
VAHEAD = 3
def set_vahead(v):
    global VAHEAD
    VAHEAD = v

class LoadSeq:
    def __init__(self, a, opt, kb=None): self.a, self.opt, self.n, self.kb = a, opt, 0, (kb or sKB)
    nocap = False
    capv = None
    def cap(self):
        self.n += 1
        c = self.capv or CAP
        if self.n > c and not self.nocap: self.a(f"s_waitcnt vmcnt({c-1})")
    def k_loads(self, beta):
        a = self.a; fl = self.opt.kvflags
        a(f"s_add_u32 s{sOFF}, s{self.kb}, {beta*4096}")
        for e in range(2):
            for j in range(2):
                self.cap()
                if beta < NB_LDS:
                    a(f"s_add_u32 m0, s{sLDSB}, {beta*8192 + (e*2+j)*1024}")
                    a(f"s_add_u32 s51, s{sOFF}, {e*512 + j*128}")
                    a(f"buffer_load_dwordx4 v{VKOFF}, s[{S_K}:{S_K+3}], s51 offen {fl} lds")
                else:
                    a(f"buffer_load_dwordx4 {k_home(beta-NB_LDS, e, j)}, v{VKOFF}, s[{S_K}:{S_K+3}], s{sOFF} offen offset:{e*512+j*128} {fl}")
    def v_loads(self, beta):
        a = self.a; fl = self.opt.kvflags if self.opt.vflags is None else self.opt.vflags
        a(f"s_add_u32 s{sOFF}, s{self.kb}, {beta*4096}")
        if beta < NB_LDS:
            a(f"s_add_u32 m0, s{sLDSB}, {beta*8192 + 4096}")
        for i in range(4):
            self.cap()
            if beta < NB_LDS:
                a(f"buffer_load_dwordx4 v{VVOFF}, s[{S_V}:{S_V+3}], s{sOFF} offen offset:{i*1024} {fl} lds")
            else:
                a(f"buffer_load_dwordx4 {v_home(beta-NB_LDS, i)}, v{VVOFF}, s[{S_V}:{S_V+3}], s{sOFF} offen offset:{i*1024} {fl}")
    def opt_block(self, fn):
        a = self.a; L = a.newlabel("Lopt")
        a(f"s_cmp_eq_u32 s{sT19}, 0")
        a(f"s_cbranch_scc1 {L}")
        fn(0)
        a.label(L)

def q_select(a, qi_code):
    a(qi_code)
    a(f"""s_lshl_b32 s{sQL}, s52, 8
    s_add_u32 s{sQL}, s{sQL}, {M_Q}
    s_lshl_b32 s52, s52, 13
    s_lshl_b32 s{sQB}, s{sHEAD}, 8
    s_add_u32 s{sQB}, s{sQB}, s52
    s_add_u32 s{sQB}, s{sQB}, {WS_Q}""")

def q_fetch(a, opt):
    L, Lok = a.newlabel("Lqf"), a.newlabel("Lqo")
    T = VT
    a(f"""s_lshl_b32 s52, s3, 6
    s_add_u32 s52, s52, s{sQB}
    s_add_u32 s52, s{sWSP}, s52
    s_addc_u32 s53, s{sWSP+1}, 0
    s_mov_b32 s{sCNT}, 0""")
    a.label(L)
    a(f"""s_load_dwordx16 s[{sQW}:{sQW+15}], s[52:53], 0x0 glc
    s_add_u32 s{sCNT}, s{sCNT}, 1
    s_waitcnt lgkmcnt(0)
    s_cmp_ge_u32 s{sCNT}, {opt.spin}
    s_cbranch_scc1 {Lok}_t
    s_cmp_eq_u32 s{sQW}, -1
    s_cbranch_scc1 {L}_s
    s_cmp_eq_u32 s{sQW+15}, -1
    s_cbranch_scc0 {Lok}_t""")
    a.label(f"{L}_s")
    a(f"s_sleep {opt.qsleep}")
    a(f"s_branch {L}")
    a.label(f"{Lok}_t")
    for k in range(16): a(f"v_writelane_b32 v{T}, s{sQW+k}, {k}")
    a(f"s_cmp_ge_u32 s{sCNT}, {opt.spin}")
    a(f"s_cbranch_scc1 {Lok}")
    a("s_mov_b32 exec_lo, 0xffff")
    a("s_mov_b32 exec_hi, 0")
    a(f"v_cmp_eq_u32 vcc, -1, v{T}")
    a("s_mov_b64 exec, -1")
    a(f"s_cbranch_vccnz {L}")
    a.label(Lok)
    a(f"""s_lshl_b32 s52, s3, 6
    s_add_u32 s52, s52, s{sQL}
    v_lshl_add_u32 v{VL}, v0, 2, s52
    s_mov_b32 exec_lo, 0xffff
    s_mov_b32 exec_hi, 0
    ds_write_b32 v{VL}, v{T}
    s_mov_b64 exec, -1
    s_waitcnt lgkmcnt(0)
    s_barrier""")

def q_to_regs(a):
    T = VLT
    a(f"""v_bfe_u32 v{T}, v0, 3, 1
    v_lshlrev_b32 v{T}, 6, v{T}                ; (n>>3)*64
    v_lshrrev_b32 v{T+1}, 4, v0
    v_lshl_add_u32 v{T}, v{T+1}, 4, v{T}       ; + g*16
    v_add_u32 v{T}, s{sQL}, v{T}
    v_xor_b32 v{T+1}, 64, v{T}""")
    for e in range(2):
        for j in range(2):
            r = VQ + e * 8 + j * 4
            a(f"ds_read_b128 v[{r}:{r+3}], v{T+e} offset:{j*128}")
    a("s_waitcnt lgkmcnt(0)")

def s_poll(a, opt, basepair, off, ok_code, ndw=1, sleep=0):
    L, Lok = a.newlabel("Lsp"), a.newlabel("Lso")
    a(f"s_mov_b32 s{sCNT}, 0")
    a.label(L)
    dst = f"s{sQW}" if ndw == 1 else f"s[{sQW}:{sQW+ndw-1}]"
    sfx = "" if ndw == 1 else f"x{ndw}"
    a(f"s_load_dword{sfx} {dst}, s[{basepair}:{basepair+1}], {hex(off)} glc")
    a("s_waitcnt lgkmcnt(0)")
    a(ok_code)
    a(f"s_cbranch_scc1 {Lok}")
    if sleep: a(f"s_sleep {sleep}")
    a(f"""s_add_u32 s{sCNT}, s{sCNT}, 1
    s_cmp_lt_u32 s{sCNT}, {opt.spin}
    s_cbranch_scc1 {L}""")
    a.label(Lok)

def wave_reduce(a, reg, op, tmp_s):
    for sh in (8, 4, 2, 1):
        a(f"{op}_dpp v{reg}, v{reg}, v{reg} row_ror:{sh} row_mask:0xf bank_mask:0xf")
    for k in range(4): a(f"v_readlane_b32 s{tmp_s+k}, v{reg}, {16*k}")
    a(f"v_mov_b32 v{reg}, s{tmp_s}")
    for k in range(1, 4): a(f"{op} v{reg}, s{tmp_s+k}, v{reg}")

def attention(a, opt, st):
    a(f"""
    s_lshr_b32 s{sHEAD}, s2, 3
    s_and_b32 s{sSPLIT}, s2, 7
    s_lshl_b32 s50, s{sSPLIT}, 2
    s_add_u32 s50, s50, s3                 ; omega
    s_cmp_eq_u32 s3, 0
    s_cselect_b32 s{sT19}, 1, 0
    s_cmp_eq_u32 s50, 1
    s_cselect_b32 s{sT19}, 1, s{sT19}
    s_mul_i32 s51, s50, 18
    s_add_u32 s52, s50, 3
    s_lshr_b32 s52, s52, 2
    s_add_u32 s51, s51, s52
    s_cmp_ge_u32 s50, 2
    s_addc_u32 s51, s51, 0
    s_add_u32 s51, s51, s{sT19}
    s_sub_u32 s51, s51, 1
    s_lshl_b32 s51, s51, 12
    s_lshl_b32 s{sKB}, s{sHEAD}, 21
    s_add_u32 s{sKB}, s{sKB}, s51
    s_mul_i32 s{sLDSB}, s3, {40*1024}
    s_cmp_ge_u32 s3, 2
    s_cselect_b32 s52, {8*1024}, 0
    s_sub_u32 s{sLDSB}, s{sLDSB}, s52
    s_cmp_eq_u32 s3, 3
    s_cselect_b32 s52, {8*1024}, 0
    s_sub_u32 s{sLDSB}, s{sLDSB}, s52
    """)
    a(f"""
    v_and_b32 v{VT}, 15, v0                ; m / n / c
    v_lshrrev_b32 v{VL}, 4, v0             ; g
    v_and_b32 v{VKOFF}, 3, v{VT}
    v_lshlrev_b32 v{VKOFF}, 2, v{VKOFF}
    v_bfe_u32 v{VVOFF}, v{VT}, 2, 1
    v_add_u32 v{VKOFF}, v{VKOFF}, v{VVOFF} ; key
    v_lshlrev_b32 v{VKOFF}, 8, v{VKOFF}
    v_lshrrev_b32 v{VVOFF}, 3, v{VT}
    v_lshlrev_b32 v{VVOFF}, 6, v{VVOFF}
    v_lshl_add_u32 v{VVOFF}, v{VL}, 4, v{VVOFF}
    v_add_u32 v{VKOFF}, v{VKOFF}, v{VVOFF}
    v_lshlrev_b32 v{VVOFF}, 4, v0
    v_add_u32 v{VLDS}, s{sLDSB}, v{VVOFF}
    """)
    st.mark()
    if opt.cpf: code_prefetch(a, "L_attn_rest", "L_chain", 2, VT, VLT, 1)
    a(f"v_and_b32 v{VT}, 15, v0")
    ls = LoadSeq(a, opt); ls.capv = opt.cap1
    ls.opt_block(ls.k_loads)
    for b in range(1, 4): ls.k_loads(b)
    a.label("L_attn_rest")
    a(f"""v_lshlrev_b32 v{VL}, 4, v{VT}
    v_mov_b32 v{SH01}, 63
    v_cmp_gt_u32 vcc, 4, v{VT}
    v_cndmask_b32 v{SH01}, v{SH01}, v{VL}, vcc
    v_subrev_u32 v{VL}, 64, v{VL}
    v_mov_b32 v{SH23}, 63
    v_cmp_gt_u32 vcc, 64, v{VL}
    v_cndmask_b32 v{SH23}, v{SH23}, v{VL}, vcc
    v_mov_b32 v7, 0
    v_mov_b32 v9, 0
    s_mov_b32 s{sC}, {hex(f32(CSCALE))}""")
    for tau in range(8):
        lo, hi = (0x00010001 << tau), (0x01000100 << tau)
        a(f"""s_mov_b32 s{sMSK+4*tau}, {hex(lo)}
        s_mov_b32 s{sMSK+4*tau+1}, {hex(hi)}
        s_mov_b32 s{sMSK+4*tau+2}, {hex(hi)}
        s_mov_b32 s{sMSK+4*tau+3}, {hex(lo)}""")
    a(f"""
    s_lshl_b32 s{sREC}, s{sHEAD}, 3
    s_add_u32 s{sREC}, s{sREC}, s{sSPLIT}
    s_mul_i32 s{sREC}, s{sREC}, {A_REC}
    """)
    Lc = a.newlabel("Lclr")
    a(f"s_cmp_eq_u32 s3, 3")
    a(f"s_cbranch_scc0 {Lc}")
    a(f"""v_mov_b32 v{VACC}, -1
    v_mov_b32 v{VACC+1}, -1
    v_mov_b32 v{VACC+2}, -1
    v_mov_b32 v{VACC+3}, -1
    s_mov_b32 exec_hi, 1""")
    for n in range(4):
        a(f"s_add_u32 s{sOFF}, s{sREC}, {WS_A + n*WS_A_CH}")
        a(f"buffer_store_dwordx4 v[{VACC}:{VACC+3}], v{VVOFF}, s[{S_WS}:{S_WS+3}], s{sOFF} offen sc0 sc1")
    a(f"""s_mov_b64 exec, -1
    s_waitcnt vmcnt(0)
    v_mov_b32 v{VACC}, 1
    v_mov_b32 v{VACC+1}, 0
    s_mov_b64 exec, 1
    buffer_atomic_add v{VACC}, v{VACC+1}, s[{S_DBG}:{S_DBG+3}], 0 offen sc1
    s_mov_b64 exec, -1""")
    a.label(Lc)
    for b in range(4, NB):
        ls.k_loads(b)
        if b == 14:
            a(f"v_mov_b32 v{VACC}, 128")
            a(f"buffer_load_dwordx2 v[{VL}:{VT}], v{VACC}, s[{S_DBG}:{S_DBG+3}], 0 offen sc1")
            ls.n += 1
    a(f"s_waitcnt vmcnt({min(16, opt.cap1)})")
    Lok, Lsp = a.newlabel("Lcok"), a.newlabel("Lcsp")
    a(f"s_mov_b32 s{sCNT}, 0")
    a.label(Lsp)
    a(f"v_sad_u8 v{VL}, v{VL}, 0, 0")
    a(f"v_sad_u8 v{VL}, v{VT}, 0, v{VL}")
    a(f"v_readfirstlane_b32 s52, v{VL}")
    a(f"s_cmp_ge_u32 s52, {opt.nchain}")
    a(f"s_cbranch_scc1 {Lok}")
    a(f"""buffer_load_dwordx2 v[{VL}:{VT}], v{VACC}, s[{S_DBG}:{S_DBG+3}], 0 offen sc1
    s_waitcnt vmcnt(0)
    s_add_u32 s{sCNT}, s{sCNT}, 1
    s_cmp_lt_u32 s{sCNT}, {opt.spin}
    s_cbranch_scc1 {Lsp}""")
    a.label(Lok)
    ls.nocap = True
    ls.opt_block(ls.v_loads)
    for b in range(1, VAHEAD + 1): ls.v_loads(b)
    q_select(a, "s_mov_b32 s52, 0")
    q_fetch(a, opt)
    q_to_regs(a)
    a(f"s_waitcnt vmcnt({4*VAHEAD})")
    a(f"s_mov_b32 s{sP}, 0")
    st.mark()
    a.label("L_pass")
    st.mark(sP, 4)
    for k in range(12): a(f"v_mov_b32 v{VPK+k}, 0xff800000")
    if opt.v2:
        Lst = a.newlabel("Lstash")
        a(f"s_cmp_eq_u32 s{sP}, 2")
        a(f"s_cbranch_scc0 {Lst}")
        a(f"s_lshl_b32 s52, s3, 10")
        a(f"s_add_u32 s52, s52, {M_STASH}")
        a(f"v_add_u32 v{VT}, s52, v{VVOFF}")
        a(f"ds_read_b128 v[{VPK+4}:{VPK+7}], v{VT}")
        a("s_waitcnt lgkmcnt(0)")
        a.label(Lst)
    pend = []
    state = {"d": 0}
    def cnd_ops(d, b, e):
        u, tau = UT[b]
        mk = sMSK + 4 * tau + 2 * e
        return [f"v_cndmask_b32 v{VPK+4*u+i}, v{VPK+4*u+i}, v{VD+4*d+i}, s[{mk}:{mk+1}]" for i in range(4)]
    def tile(b, e, A0, A1):
        d = state["d"]; state["d"] = (d + 1) % 3
        D = f"v[{VD+4*d}:{VD+4*d+3}]"
        q0 = VQ + e * 8
        c = cnd_ops(*pend.pop(0)) if len(pend) == 2 else []
        a(f"v_mfma_f32_16x16x32_bf16 {D}, {A0}, v[{q0}:{q0+3}], 0")
        for o in c[:2]: a(o)
        a(f"v_mfma_f32_16x16x32_bf16 {D}, {A1}, v[{q0+4}:{q0+7}], {D}")
        for o in c[2:]: a(o)
        pend.append((d, b, e))
    def flush():
        while pend:
            for o in cnd_ops(*pend.pop(0)): a(o)
    def lds_read_tile(b, e):
        a(f"ds_read_b128 v[{VLT}:{VLT+3}], v{VLDS} offset:{b*8192 + (e*2)*1024}")
        a(f"ds_read_b128 v[{VLT+4}:{VLT+7}], v{VLDS} offset:{b*8192 + (e*2+1)*1024}")
    LT0, LT1 = f"v[{VLT}:{VLT+3}]", f"v[{VLT+4}:{VLT+7}]"
    Lo = a.newlabel("Lqk0")
    a(f"s_cmp_eq_u32 s{sT19}, 0")
    a(f"s_cbranch_scc1 {Lo}")
    for e in range(2):
        lds_read_tile(0, e)
        a("s_waitcnt lgkmcnt(0)")
        tile(0, e, LT0, LT1)
    flush()
    a.label(Lo)
    state["d"] = 0
    def qk_part(lds_blocks, reg_blocks):
        lt_ = [(b, e) for b in lds_blocks for e in range(2)]
        rt_ = [(b, e) for b in reg_blocks for e in range(2)]
        per = len(rt_) // len(lt_)
        ri = 0
        for (b, e) in lt_:
            lds_read_tile(b, e)
            for _ in range(per):
                (rb, re_) = rt_[ri]; ri += 1
                tile(rb, re_, k_home(rb-NB_LDS, re_, 0), k_home(rb-NB_LDS, re_, 1))
            a("s_waitcnt lgkmcnt(0)")
            tile(b, e, LT0, LT1)
        while ri < len(rt_):
            (rb, re_) = rt_[ri]; ri += 1
            tile(rb, re_, k_home(rb-NB_LDS, re_, 0), k_home(rb-NB_LDS, re_, 1))
    if opt.v2:
        qk_part([1, 2], [b for b in range(5, NB) if b not in G1])
        Lsk = a.newlabel("Lqkb")
        flush()
        a(f"s_cmp_eq_u32 s{sP}, 2")
        a(f"s_cbranch_scc1 {Lsk}")
        Lnw = a.newlabel("Lnw")
        a(f"s_cmp_eq_u32 s{sP}, 3")
        a(f"s_cbranch_scc0 {Lnw}")
        a("s_waitcnt vmcnt(0)")
        a.label(Lnw)
        state["d"] = 0
        qk_part([3, 4], [b for b in G1 if b >= NB_LDS])
        flush()
        a.label(Lsk)
    else:
        qk_part([1, 2, 3, 4], list(range(5, NB)))
        flush()
    st.mark_if(sP, 3)
    Lr0, Lr1 = a.newlabel("Lrl0"), a.newlabel("Lrl1")
    a(f"s_cmp_eq_u32 s{sP}, 1")
    a(f"s_cbranch_scc0 {Lr1}")
    a(f"s_add_u32 s{sKB}, s{sKB}, 0x4000000")
    ls2 = LoadSeq(a, opt); ls2.nocap = True
    ls2.opt_block(ls2.k_loads)
    klist = [b for b in range(1, NB) if not (opt.v2 and b in G1)]
    K_EARLY = opt.kearly
    for b in klist[:K_EARLY]: ls2.k_loads(b)
    a.label(Lr1)
    for k in range(12):
        a(f"v_mov_b32_dpp v{VD+k}, v{VPK+k} row_ror:8 row_mask:0xf bank_mask:0xf")
    for k in range(12):
        a(f"v_permlane32_swap_b32 v{VPK+k}, v{VD+k}")
    for k in range(12):
        a(f"v_add_f32_dpp v{VPK+k}, v{VD+k}, v{VPK+k} row_ror:8 row_mask:0xf bank_mask:0xf")
    a(f"v_max3_f32 v{VT}, v{VPK}, v{VPK+1}, v{VPK+2}")
    for k in range(3, 11, 2): a(f"v_max3_f32 v{VT}, v{VT}, v{VPK+k}, v{VPK+k+1}")
    a(f"v_max_f32 v{VT}, v{VT}, v{VPK+11}")
    wave_reduce(a, VT, "v_max_f32", 50)
    st.mark_if(sP, 3)
    a(f"v_mul_f32 v{VT}, s{sC}, v{VT}")
    for k in range(12): a(f"v_fma_f32 v{VPK+k}, v{VPK+k}, s{sC}, -v{VT}")
    for k in range(12): a(f"v_exp_f32 v{VPK+k}, v{VPK+k}")
    a(f"v_add_f32 v{VL}, v{VPK}, v{VPK+1}")
    for k in range(2, 12): a(f"v_add_f32 v{VL}, v{VL}, v{VPK+k}")
    for k in range(12): a(f"v_cvt_pk_bf16_f32 v{VPK+k}, v{VPK+k}, 0")
    for k in range(4): a(f"v_mov_b32 v{VACC+k}, 0")
    st.mark_if(sP, 3)
    ACC = f"v[{VACC}:{VACC+3}]"
    stt = {"a": 0, "prev": None, "pp": None}
    def bc(b, i):
        s_ = stt["a"]; stt["a"] ^= 1
        u, tau = UT[b]
        P = VPA if s_ == 0 else VPB
        a(f"v_mov_b32_dpp v{P}, v{VPK+4*u+i} row_newbcast:{tau} row_mask:0xf bank_mask:0xf")
        return (P, s_)
    def sh(P, s_):
        A = VD + 4 * s_
        a(f"v_lshlrev_b64 v[{A}:{A+1}], v{SH01}, v[{P}:{P+1}]")
        a(f"v_lshlrev_b64 v[{A+2}:{A+3}], v{SH23}, v[{P}:{P+1}]")
        return f"v[{A}:{A+3}]"
    pipe = []
    def slot(b, i, B, pre=None):
        pipe.append({"P": bc(b, i), "B": B, "pre": pre, "A": None})
        if len(pipe) >= 2: pipe[-2]["A"] = sh(*pipe[-2]["P"])
        if len(pipe) == 3:
            p = pipe.pop(0)
            if p["pre"]: p["pre"]()
            a(f"v_mfma_f32_16x16x32_bf16 {ACC}, {p['A']}, {p['B']}, {ACC}")
    def pv_flush():
        while pipe:
            if pipe[-1]["A"] is None: pipe[-1]["A"] = sh(*pipe[-1]["P"])
            p = pipe.pop(0)
            if p["pre"]: p["pre"]()
            a(f"v_mfma_f32_16x16x32_bf16 {ACC}, {p['A']}, {p['B']}, {ACC}")
    Lres, Lpvd = a.newlabel("Lpvres"), a.newlabel("Lpvd")
    a(f"s_bitcmp1_b32 s{sP}, 0")
    a(f"s_cbranch_scc1 {Lres}")
    lv = LoadSeq(a, opt); lv.nocap = True
    lt3 = [VLT, VLT + 4, VD + 8]
    def arrival_block(b, last):
        if b + VAHEAD < NB and b >= 1: lv.v_loads(b + VAHEAD)
        after = min(NB - 1, b + VAHEAD) - b if b >= 1 else VAHEAD
        a(f"s_waitcnt vmcnt({4*after})")
        if b < NB_LDS:
            for i in range(4):
                t = lt3[i % 3] if i < 3 else lt3[0]
                if i < 3: a(f"ds_read_b128 v[{t}:{t+3}], v{VLDS} offset:{b*8192 + 4096 + i*1024}")
            for i in range(4):
                t = lt3[i % 3]
                if i == 3:
                    pv_flush()
                    a(f"ds_read_b128 v[{t}:{t+3}], v{VLDS} offset:{b*8192 + 4096 + 3*1024}")
                slot(b, i, f"v[{t}:{t+3}]", pre=(lambda: a("s_waitcnt lgkmcnt(0)")))
            pv_flush()
        else:
            for i in range(4): slot(b, i, v_home(b - NB_LDS, i))
    Lo = a.newlabel("Lpa0")
    a(f"s_cmp_eq_u32 s{sT19}, 0")
    a(f"s_cbranch_scc1 {Lo}")
    arrival_block(0, False)
    a.label(Lo)
    stt["a"] = 0
    for b in range(1, NB): arrival_block(b, b == NB - 1)
    pv_flush()
    a(f"s_branch {Lpvd}")
    a.label(Lres)
    stt["a"] = 0
    Lo = a.newlabel("Lpv0")
    a(f"s_cmp_eq_u32 s{sT19}, 0")
    a(f"s_cbranch_scc1 {Lo}")
    for i in range(3): a(f"ds_read_b128 v[{lt3[i]}:{lt3[i]+3}], v{VLDS} offset:{4096 + i*1024}")
    for i in range(3): slot(0, i, f"v[{lt3[i]}:{lt3[i]+3}]", pre=(lambda: a("s_waitcnt lgkmcnt(0)")))
    pv_flush()
    a(f"ds_read_b128 v[{VLT}:{VLT+3}], v{VLDS} offset:{4096 + 3*1024}")
    slot(0, 3, f"v[{VLT}:{VLT+3}]", pre=(lambda: a("s_waitcnt lgkmcnt(0)")))
    pv_flush()
    a.label(Lo)
    stt["a"] = 0
    lds_items = [(b, i) for b in range(1, NB_LDS) for i in range(4)]
    reg_items = [(b, i) for b in range(NB_LDS, NB) for i in range(4)]
    lq = []; li = [0]
    def lds_issue():
        if li[0] < len(lds_items):
            b, i = lds_items[li[0]]; t = lt3[li[0] % 3]; li[0] += 1
            a(f"ds_read_b128 v[{t}:{t+3}], v{VLDS} offset:{b*8192 + 4096 + i*1024}")
            lq.append((b, i, t))
    lds_issue(); lds_issue(); lds_issue()
    cnt = 0; since = []
    for (b, i) in reg_items:
        slot(b, i, v_home(b - NB_LDS, i))
        cnt += 1
        since = [x + 1 for x in since]
        if since and since[0] >= 2:
            since.pop(0); lds_issue()
        if cnt % 3 == 0 and lq:
            lb, lidx, t = lq.pop(0)
            na = len(lq)
            slot(lb, lidx, f"v[{t}:{t+3}]", pre=(lambda n=na: a(f"s_waitcnt lgkmcnt({n})")))
            since = [x + 1 for x in since]
            since.append(0)
    assert not lq and li[0] == len(lds_items), (lq, li)
    pv_flush()
    a.label(Lpvd)
    st.mark_if(sP, 3)
    wave_reduce(a, VL, "v_add_f32", 50)
    a(f"""v_mov_b32 v{VD}, v{VT}
    v_mul_f32 v{VD+1}, 0.5, v{VL}
    s_lshl_b32 s52, s3, 3
    s_add_u32 s52, s52, {M_ST}
    v_mov_b32 v{VD+2}, s52
    ds_write_b64 v{VD+2}, v[{VD}:{VD+1}]
    v_and_b32 v{VD+3}, 15, v0
    v_lshlrev_b32 v{VD+3}, 5, v{VD+3}
    v_lshrrev_b32 v{VD+4}, 4, v0
    v_lshl_add_u32 v{VD+3}, v{VD+4}, 4, v{VD+3}
    s_lshl_b32 s52, s3, 9
    s_add_u32 s52, s52, {M_O}
    v_add_u32 v{VD+3}, s52, v{VD+3}
    s_mov_b32 exec_hi, 0
    ds_write_b128 v{VD+3}, v[{VACC}:{VACC+3}]
    s_mov_b64 exec, -1
    s_waitcnt lgkmcnt(0)
    s_barrier""")
    Lp = a.newlabel("Lpub")
    a(f"s_cmp_eq_u32 s3, 0")
    a(f"s_cbranch_scc0 {Lp}")
    a(f"v_add_u32 v{VD}, {M_O}, v{VVOFF}")
    a(f"v_mov_b32 v{VD+1}, {M_ST}")
    a(f"ds_read_b128 v[{VPK}:{VPK+3}], v{VD+1}")
    a(f"ds_read_b128 v[{VPK+4}:{VPK+7}], v{VD+1} offset:16")
    O = [VD + 4, VD + 8, VLT, VLT + 4]
    for w in range(4): a(f"ds_read_b128 v[{O[w]}:{O[w]+3}], v{VD} offset:{w*512}")
    a(f"""s_mul_i32 s52, s{sP}, {WS_A_CH}
    s_add_u32 s52, s52, s{sREC}
    s_waitcnt lgkmcnt(4)
    v_max_f32 v{VT}, v{VPK}, v{VPK+2}
    v_max3_f32 v{VT}, v{VT}, v{VPK+4}, v{VPK+6}""")
    for w in range(4): a(f"v_sub_f32 v{VPK+2*w}, v{VPK+2*w}, v{VT}")
    for w in range(4): a(f"v_exp_f32 v{VPK+2*w}, v{VPK+2*w}")
    a(f"v_mul_f32 v{VL}, v{VPK}, v{VPK+1}")
    for w in range(1, 4): a(f"v_fmac_f32 v{VL}, v{VPK+2*w}, v{VPK+2*w+1}")
    a("s_waitcnt lgkmcnt(0)")
    for c in range(4): a(f"v_mul_f32 v{O[0]+c}, v{O[0]+c}, v{VPK}")
    for w in range(1, 4):
        for c in range(4): a(f"v_fmac_f32 v{O[0]+c}, v{O[w]+c}, v{VPK+2*w}")
    a(f"""v_cmp_eq_u32 vcc, 32, v0
    v_cndmask_b32 v{O[0]}, v{O[0]}, v{VT}, vcc
    v_cndmask_b32 v{O[0]+1}, v{O[0]+1}, v{VL}, vcc
    s_mov_b32 exec_hi, 1
    buffer_store_dwordx4 v[{O[0]}:{O[0]+3}], v{VVOFF}, s[{S_WS}:{S_WS+3}], s52 offen sc0 sc1
    s_mov_b64 exec, -1""")
    a.label(Lp)
    a("s_barrier")
    st.mark(sP, 4)
    Lnr, Lend = a.newlabel("Lnr"), a.newlabel("Laend")
    a(f"s_cmp_eq_u32 s{sP}, 3")
    a(f"s_cbranch_scc1 {Lend}")
    a(f"s_cmp_eq_u32 s{sP}, 1")
    a(f"s_cbranch_scc0 {Lnr}")
    ls2.nocap = False; ls2.n = 1000
    for b in klist[K_EARLY:]: ls2.k_loads(b)
    ls2.nocap = True
    ls2.opt_block(ls2.v_loads)
    for b in range(1, VAHEAD + 1): ls2.v_loads(b)
    q_select(a, "s_mov_b32 s52, 1")
    q_to_regs(a)
    a(f"s_waitcnt vmcnt({4*VAHEAD})")
    a(f"s_mov_b32 s{sP}, 2")
    a("s_branch L_pass")
    a.label(Lnr)
    Lp2, Lqp = a.newlabel("Lp2"), a.newlabel("Lqp")
    a(f"s_cmp_eq_u32 s{sP}, 0")
    a(f"s_cbranch_scc0 {Lp2}")
    a(f"s_add_u32 s{sKB2}, s{sKB}, 0x4000000")
    q_select(a, "s_mov_b32 s52, 1")
    q_fetch(a, opt)
    q_to_regs(a)
    def gate(word):
        Lg, Lgo = a.newlabel("Lgate"), a.newlabel("Lgateok")
        a(f"s_mov_b32 s{sCNT}, 0")
        a(f"v_mov_b32 v{VT}, {WS_FLAG + 4*word}")
        a.label(Lg)
        a(f"""buffer_load_dword v{VL}, v{VT}, s[{S_WS}:{S_WS+3}], 0 offen sc1
        s_waitcnt vmcnt(0)
        v_readfirstlane_b32 s52, v{VL}
        s_cmp_lg_u32 s52, -1
        s_cbranch_scc1 {Lgo}
        s_sleep 4
        s_add_u32 s{sCNT}, s{sCNT}, 1
        s_cmp_lt_u32 s{sCNT}, {opt.spin}
        s_cbranch_scc1 {Lg}""")
        a.label(Lgo)
    if opt.gate & 1: gate(0)
    TS = [(56, 60), (32, 40), (12, 52)]
    tl2 = [(b, e) for b in G1 for e in range(2)]
    outq = []
    def ld(t):
        b, e = tl2[t]
        a(f"s_add_u32 s{sOFF}, s{sKB2}, {b*4096}")
        for j in range(2):
            r = TS[t % 3][j]
            a(f"buffer_load_dwordx4 v[{r}:{r+3}], v{VKOFF}, s[{S_K}:{S_K+3}], s{sOFF} offen offset:{e*512+j*128} {opt.kvflags if opt.p2flags is None else opt.p2flags}")
            outq.append(t)
    def wt(tag):
        i = len(outq) - 1 - outq[::-1].index(tag)
        a(f"s_waitcnt vmcnt({len(outq) - 1 - i})")
        del outq[:i + 1]
    for t in range(3): ld(t)
    for k in range(4): a(f"v_mov_b32 v{VPK+4+k}, 0xff800000")
    prev = None
    def fin2(dd, b, e):
        u, tau = UT[b]
        mk = sMSK + 4 * tau + 2 * e
        for i in range(4):
            a(f"v_cndmask_b32 v{VPK+4+i}, v{VPK+4+i}, v{VD+4*dd+i}, s[{mk}:{mk+1}]")
    for t, (b, e) in enumerate(tl2):
        wt(t)
        dd = t % 2
        D = f"v[{VD+4*dd}:{VD+4*dd+3}]"
        q0 = VQ + e * 8
        r0, r1 = TS[t % 3]
        a(f"v_mfma_f32_16x16x32_bf16 {D}, v[{r0}:{r0+3}], v[{q0}:{q0+3}], 0")
        a(f"v_mfma_f32_16x16x32_bf16 {D}, v[{r1}:{r1+3}], v[{q0+4}:{q0+7}], {D}")
        if t + 3 < len(tl2): ld(t + 3)
        if prev: fin2(*prev)
        prev = (dd, b, e)
    fin2(*prev)
    a(f"s_lshl_b32 s52, s3, 10")
    a(f"s_add_u32 s52, s52, {M_STASH}")
    a(f"v_add_u32 v{VT}, s52, v{VVOFF}")
    a(f"ds_write_b128 v{VT}, v[{VPK+4}:{VPK+7}]")
    a("s_waitcnt lgkmcnt(0)")
    a(f"s_branch {Lqp}")
    a.label(Lp2)
    if opt.gate & 2: gate(1)
    ls3 = LoadSeq(a, opt)
    ls3.nocap = True
    for b in G1: ls3.k_loads(b)
    a.label(Lqp)
    q_select(a, f"""s_lshr_b32 s52, s{sP}, 1
    s_add_u32 s52, s52, 2""")
    q_fetch(a, opt)
    q_to_regs(a)
    a(f"s_add_u32 s{sP}, s{sP}, 1")
    a("s_branch L_pass")
    a.label(Lend)
    st.dump(VD, [(0, 1, True), (10, 2, False), (12, 5, False), (13, 8, False), (3, 13, False), (1, 14, False)])


def code_prefetch(a, start, end, nloads, vtmp, vdst, wave, sb=50, dk="v"):
    L, Lpc = a.newlabel("Lcp"), a.newlabel("Lpc")
    a(f"s_cmp_eq_u32 s3, {wave}")
    a(f"s_cbranch_scc0 {L}")
    a(f"s_getpc_b64 s[{sb}:{sb+1}]")
    a.label(Lpc)
    a(f"s_add_u32 s{sb}, s{sb}, {start}-{Lpc}")
    a(f"s_addc_u32 s{sb+1}, s{sb+1}, 0")
    a(f"s_mov_b32 s{sb+2}, {end}-{start}-4")
    for k in range(nloads):
        a(f"v_lshlrev_b32 v{vtmp}, 7, v0")
        if k: a(f"v_add_u32 v{vtmp}, {8192*k}, v{vtmp}")
        a(f"v_min_u32 v{vtmp}, s{sb+2}, v{vtmp}")
        a(f"global_load_dword {dk}{vdst+k}, v{vtmp}, s[{sb}:{sb+1}]")
    a.label(L)

def prologue(a, opt):
    a(f"""
    s_cmp_ge_u32 s2, 256
    s_cbranch_scc1 L_exit
    s_load_dwordx16 s[56:71], s[0:1], 0
    s_load_dwordx8 s[72:79], s[0:1], 64
    s_load_dwordx2 s[80:81], s[0:1], 96
    v_lshrrev_b32 v1, 6, v0
    v_readfirstlane_b32 s3, v1
    v_and_b32 v0, 63, v0
    s_waitcnt lgkmcnt(0)
    """)
    srd(a, S_WS, P_WS, WS_SIZE)
    srd(a, S_DBG, P_DBG, 256)

def build(opt):
    a = Asm()
    prologue(a, opt)
    a("""s_and_b32 s4, s2, 7
    s_cmp_eq_u32 s4, 7
    s_cbranch_scc1 L_chain""")
    srd(a, S_K, P_K, 0x8000000)
    srd(a, S_V, P_V, 0x8000000)
    a(f"s_mov_b64 s[{sWSP}:{sWSP+1}], s[{P_WS}:{P_WS+1}]")
    a(f"s_mov_b64 s[{sDBGP}:{sDBGP+1}], s[{P_DBG}:{P_DBG+1}]")
    st = Stamp(a, opt.stamps, base=88, tmp=46, nmax=14)
    if opt.stamps:
        for k in range(14): a(f"s_mov_b32 s{88+k}, 0")
    if opt.attn: attention(a, opt, st)
    a("s_branch L_exit")
    a.label("L_chain")
    if opt.chain:
        import chain
        st = Stamp(a, opt.stamps)
        chain.chain(a, opt, st)
    a.label("L_exit")
    return a.text(256, 256, 160 * 1024, vgpr=512, sgpr=102, accum=256, header=opt.header)

if __name__ == "__main__":
    p = argparse.ArgumentParser()
    p.add_argument("--out", default="k.s")
    p.add_argument("--stamps", type=int, default=0)
    p.add_argument("--chain", type=int, default=1)
    p.add_argument("--kvflags", default="nt")
    p.add_argument("--vflags", default=None)
    p.add_argument("--spin", type=int, default=20000)
    p.add_argument("--kearly", type=int, default=2)
    p.add_argument("--wflags", default="nt")
    p.add_argument("--safe", type=int, default=0)
    p.add_argument("--attn", type=int, default=1)
    p.add_argument("--v2", type=int, default=1)
    p.add_argument("--gate", type=int, default=3)
    p.add_argument("--cpf", type=int, default=1)
    p.add_argument("--pretouch", type=int, default=1)
    p.add_argument("--qsleep", type=int, default=1)
    p.add_argument("--gsleep", type=int, default=16)
    p.add_argument("--p2flags", default=None)
    p.add_argument("--eflag", type=int, default=0)
    p.add_argument("--ny", type=int, default=8)
    p.add_argument("--cap1", type=int, default=4)
    p.add_argument("--vahead", type=int, default=2)
    p.add_argument("--touch", type=int, default=0)
    p.add_argument("--tflags", default="")
    p.add_argument("--cap", type=int, default=16)
    p.add_argument("--initmark", type=int, default=0)
    opt = p.parse_args()
    opt.nchain = 32 if opt.chain else 0
    set_cap(opt.cap)
    set_vahead(opt.vahead)
    set_ny(opt.ny)
    opt.header = ""
    open(opt.out, "w").write(build(opt))
```

```python
from gen import *
import kern
from kern import *

S_WQ, S_WO, S_W1, S_W2, S_X, S_B1, S_B2, S_OUT = 24, 28, 32, 36, 40, 44, 48, 52
sI, sKQ, sNQ, sIT, sN, sFAST, sT0, sT1, sT2, sCN = 4, 5, 6, 7, 8, 9, 10, 11, 12, 13
sW2K, sW9K, sQI, sROW = 56, 57, 58, 15
sG1, sG2, sG3, sHI = 60, 62, 64, 66
sRL = 70

VVEC, VACT, VHB, VCSC, VXR, VBB, VHD, VCSE, VW = 1, 2, 3, 4, 5, 9, 10, 11, 12

H_EL = 0
H_DL = 56 * 1024
H_D8 = 112 * 1024
H_C8 = 130 * 1024
BUF = [56 * 1024, 83 * 1024]
L_MISC = 148 * 1024
L_ACTA = L_MISC
L_ACTB = L_MISC + 1280
L_OACT = L_MISC + 2560
L_RED = L_MISC + 3584
L_ST = L_MISC + 5888
L_XIN = L_MISC + 6144
NE_REG = 11
NRING = 11

def home(idx):
    if idx < 52: return ("v", 48 + 4 * idx)
    return ("a", 4 * (idx - 52))
def hs(idx):
    k, r = home(idx); return f"{k}[{r}:{r+3}]"
def hs2(idx, half):
    k, r = home(idx); return f"{k}[{r+2*half}:{r+2*half+1}]"
H_E = {(ks, nt): ks * 2 + nt for ks in range(NE_REG) for nt in range(2)}
H_B = {(ks, nt): 22 + ks * 9 + nt for ks in range(4) for nt in range(9)}
H_C = {(ks, nt): 58 + ks * 2 + nt for ks in range(18) for nt in range(2)}
H_D = {(ks, nt): 94 + ks * 2 + nt for ks in range(NE_REG) for nt in range(2)}

class VM:
    def __init__(self, a): self.a, self.q = a, []
    def issue(self, tag, text): self.a(text); self.q.append(tag)
    def note(self, tag): self.q.append(tag)
    def wait(self, tag):
        if tag not in self.q: return
        i = len(self.q) - 1 - self.q[::-1].index(tag)
        n = len(self.q) - 1 - i
        assert n <= 62
        self.a(f"s_waitcnt vmcnt({n})")
        del self.q[:i + 1]
    def wait_all(self):
        self.a("s_waitcnt vmcnt(0)"); self.q = []

class LQ:
    def __init__(self, a): self.a, self.q = a, []
    def issue(self, tag, text): self.a(text); self.q.append(tag); assert len(self.q) <= 15, self.q
    def need(self, tag):
        if tag not in self.q: return
        i = len(self.q) - 1 - self.q[::-1].index(tag)
        self.a(f"s_waitcnt lgkmcnt({len(self.q) - 1 - i})")
        del self.q[:i + 1]
    def drain(self):
        if self.q: self.a("s_waitcnt lgkmcnt(0)")
        self.q = []

def pub_flags(a, emit):
    L1, L2 = a.newlabel("Lsf"), a.newlabel("Lsd")
    a(f"s_cmp_eq_u32 s{sFAST}, 0")
    a(f"s_cbranch_scc1 {L1}")
    emit("")
    a(f"s_branch {L2}")
    a.label(L1)
    emit("sc0 sc1")
    a.label(L2)

def lanes_lt(a, n):
    if n <= 32:
        a(f"s_mov_b32 exec_lo, {hex((1 << n) - 1) if n < 32 else -1}")
        a("s_mov_b32 exec_hi, 0")
    else:
        a("s_mov_b32 exec_lo, -1")
        a(f"s_mov_b32 exec_hi, {hex((1 << (n - 32)) - 1)}")
def lanes_all(a): a("s_mov_b64 exec, -1")

def sent_check(a, regs, tmp):
    regs = list(regs)
    if len(regs) >= 3:
        a(f"v_max3_u32 v{tmp}, v{regs[0]}, v{regs[1]}, v{regs[2]}"); regs = regs[3:]
    else:
        a(f"v_max_u32 v{tmp}, v{regs[0]}, v{regs[1]}"); regs = regs[2:]
    while regs:
        if len(regs) >= 2: a(f"v_max3_u32 v{tmp}, v{tmp}, v{regs[0]}, v{regs[1]}"); regs = regs[2:]
        else: a(f"v_max_u32 v{tmp}, v{tmp}, v{regs[0]}"); regs = regs[1:]
    a(f"v_cmp_eq_u32 vcc, -1, v{tmp}")

def poll(a, opt, loads, check):
    L, Lok = a.newlabel("Lpl"), a.newlabel("Lpk")
    a(f"s_mov_b32 s{sCN}, 0")
    a.label(L)
    loads()
    a("s_waitcnt vmcnt(0)")
    check()
    a(f"s_cbranch_vccz {Lok}")
    a(f"""s_add_u32 s{sCN}, s{sCN}, 1
    s_cmp_lt_u32 s{sCN}, {opt.spin}
    s_cbranch_scc1 {L}""")
    a.label(Lok)

class Stager:
    def __init__(self, a, opt, vm):
        self.a, self.opt, self.vm = a, opt, vm
        self.V4, self.V1 = [VW + 24, VW + 25], VW + 26
        self.VB = [VW + 32, VW + 33, VW + 34, VW + 35]
        self.V9 = [VW + 27, VW + 28, VW + 29]
        self.TMP = VW + 30
        self.cur = None
    def tr_lane(self, dst, rowshift):
        a = self.a; T = self.TMP
        a(f"""v_lshrrev_b32 v{T}, 4, v0
        v_bfe_u32 v{T+1}, v0, 2, 2
        v_lshl_add_u32 v{T}, v{T}, 3, v{T+1}
        v_lshlrev_b32 v{T}, {rowshift}, v{T}
        v_and_b32 v{T+1}, 3, v0
        v_lshl_add_u32 v{dst}, v{T+1}, 3, v{T}""")
    def tr_lane_sw(self, dst, wave_term):
        a = self.a; T = self.TMP
        a(f"""v_bfe_u32 v{T+1}, v0, 2, 2                 ; r
        v_lshrrev_b32 v{T}, 4, v0
        v_lshl_add_u32 v{T}, v{T}, 3, v{T+1}              ; 8g + r
        v_lshlrev_b32 v{dst}, 8, v{T}
        v_bfe_u32 v{T}, v0, 1, 1                          ; c>>1
        v_lshlrev_b32 v{T+1}, 1, v{T+1}                   ; 2r""")
        if wave_term:
            a(f"s_lshl_b32 s{sT0}, s3, 2")
            a(f"v_add_u32 v{T}, s{sT0}, v{T}")
        a(f"""v_xor_b32 v{T}, v{T}, v{T+1}
        v_lshl_add_u32 v{dst}, v{T}, 4, v{dst}
        v_and_b32 v{T}, 1, v0
        v_lshl_add_u32 v{dst}, v{T}, 3, v{dst}""")
    def setup(self):
        self.cur = None
    def select(self, key, stride, rowcode):
        if self.cur == key: return
        a = self.a; T = self.TMP
        a(f"""v_lshrrev_b32 v{T}, 4, v0                  ; j
        v_mul_u32_u24 v{self.V4[1]}, {stride}, v{T}
        v_lshlrev_b32 v{T}, 1, v{T}
        v_and_b32 v{T+1}, 15, v0
        v_xor_b32 v{T}, v{T}, v{T+1}
        v_lshlrev_b32 v{T}, 4, v{T}
        v_add_u32 v{self.V4[0]}, v{self.V4[1]}, v{T}
        v_xor_b32 v{T}, 128, v{T}
        v_add_u32 v{self.V4[1]}, v{self.V4[1]}, v{T}
        v_lshrrev_b32 v{self.V1}, 1, v0
        v_mul_u32_u24 v{self.V1}, {stride}, v{self.V1}
        v_and_b32 v{T}, 1, v0
        v_lshl_add_u32 v{self.V1}, v{T}, 4, v{self.V1}""")
        a(rowcode)
        self.cur = key
    def dma_cu(self, tag, srd, stride, ks, lds):
        a, fl = self.a, self.opt.wflags
        a(f"s_mul_i32 s{sT1}, s3, {8 * stride}")
        a(f"s_add_u32 s{sT1}, s{sT1}, s{sROW}")
        for t in range(2):
            a(f"s_add_u32 m0, s{sW2K}, {lds + t * 1024}")
            a(f"s_add_u32 s{sT0}, s{sT1}, {(ks * 32 + 4 * t) * stride}")
            self.vm.issue(tag, f"buffer_load_dwordx4 v{self.V4[t]}, s[{srd}:{srd+3}], s{sT0} offen {fl} lds")
    def dma_wv(self, tag, srd, stride, ks, lds):
        a, fl = self.a, self.opt.wflags
        for t in range(8):
            a(f"s_add_u32 m0, s{sW9K}, {lds + t * 1024}")
            a(f"s_add_u32 s{sT0}, s{sROW}, {(ks * 32 + 4 * t) * stride}")
            self.vm.issue(tag, f"buffer_load_dwordx4 v{self.V4[t & 1]}, s[{srd}:{srd+3}], s{sT0} offen {fl} lds")
        a(f"s_add_u32 m0, s{sW9K}, {lds + 8192}")
        a(f"s_add_u32 s{sT0}, s{sROW}, {ks * 32 * stride + 256}")
        self.vm.issue(tag, f"buffer_load_dwordx4 v{self.V1}, s[{srd}:{srd+3}], s{sT0} offen {fl} lds")
    def dma_t8(self, srd, stride, ks, lds):
        a, fl = self.a, self.opt.wflags
        a(f"s_mov_b32 m0, {lds}")
        a(f"s_add_u32 s{sT0}, s{sROW}, {ks * 32 * stride + 256}")
        a(f"buffer_load_dwordx4 v{self.V1}, s[{srd}:{srd+3}], s{sT0} offen {fl} lds")
    def rd_cu(self, base_lds, imgs, dsts):
        a = self.a; VB = self.VB
        self.tr_lane_sw(VB[0], True)
        a(f"v_add_u32 v{VB[0]}, {base_lds}, v{VB[0]}")
        a(f"v_xor_b32 v{VB[1]}, 32, v{VB[0]}")
        a(f"v_xor_b32 v{VB[2]}, 128, v{VB[0]}")
        a(f"v_xor_b32 v{VB[3]}, 160, v{VB[0]}")
        n = 0
        for k, off in enumerate(imgs):
            for nt in range(2):
                for half in range(2):
                    a(f"ds_read_b64_tr_b16 {dsts(k, nt, half)}, v{VB[nt + 2 * half]} offset:{off + half * 1024}")
                    n += 1
                    if n % 12 == 0: a("s_waitcnt lgkmcnt(0)")
        a("s_waitcnt lgkmcnt(0)")
    def rd_wv(self, base_lds, ks):
        a = self.a; VB = self.VB
        self.tr_lane_sw(VB[0], False)
        a(f"s_add_u32 s{sT0}, s{sW9K}, {base_lds}")
        a(f"v_add_u32 v{VB[0]}, s{sT0}, v{VB[0]}")
        self.tr_lane(VB[1], 5)
        a(f"v_add_u32 v{VB[1]}, s{sT0}, v{VB[1]}")
        for nt in range(8):
            for half in range(2):
                t = VB[2 + half]
                a(f"v_xor_b32 v{t}, {nt * 32 ^ half * 128}, v{VB[0]}")
                a(f"ds_read_b64_tr_b16 {hs2(H_B[(ks, nt)], half)}, v{t} offset:{half * 1024}")
            if nt == 5: a("s_waitcnt lgkmcnt(0)")
        for half in range(2):
            a(f"ds_read_b64_tr_b16 {hs2(H_B[(ks, 8)], half)}, v{VB[1]} offset:{8192 + half * 128}")
        a("s_waitcnt lgkmcnt(0)")
    def select9(self, key, stride, rowcode):
        if self.cur == key: return
        a = self.a; T = self.TMP
        for j in range(3):
            d = self.V9[j]
            a(f"""s_lshl_b32 s{sT0}, s3, 6
            v_add_u32 v{T}, s{sT0}, v0
            v_add_u32 v{T}, {j * 256}, v{T}
            v_mul_u32_u24 v{d}, 3641, v{T}
            v_lshrrev_b32 v{d}, 16, v{d}
            v_mul_u32_u24 v{T+1}, 18, v{d}
            v_sub_u32 v{T}, v{T}, v{T+1}
            v_mul_u32_u24 v{d}, {stride}, v{d}
            v_lshl_add_u32 v{d}, v{T}, 4, v{d}""")
        a(rowcode)
        self.cur = key
    def dma9(self, tag, srd, off, lds):
        a, fl = self.a, self.opt.wflags
        a(f"s_add_u32 s{sT0}, s{sROW}, {off}")
        a(f"s_lshl_b32 s{sT1}, s3, 10")
        for j in range(2):
            a(f"s_add_u32 m0, s{sT1}, {lds + j * 4096}")
            self.vm.issue(tag, f"buffer_load_dwordx4 v{self.V9[j]}, s[{srd}:{srd+3}], s{sT0} offen {fl} lds")
        L = a.newlabel("Ld9")
        a("s_cmp_eq_u32 s3, 0")
        a(f"s_cbranch_scc0 {L}")
        a(f"s_mov_b32 m0, {lds + 8192}")
        a(f"buffer_load_dwordx4 v{self.V9[2]}, s[{srd}:{srd+3}], s{sT0} offen {fl} lds")
        a.label(L)
    def tr288(self, base_lds, wave_cols):
        a = self.a; T = self.TMP; VB = self.VB[0]
        a(f"""v_lshrrev_b32 v{T}, 4, v0
        v_bfe_u32 v{T+1}, v0, 2, 2
        v_lshl_add_u32 v{T}, v{T}, 3, v{T+1}
        v_mul_u32_u24 v{VB}, 288, v{T}
        v_and_b32 v{T}, 3, v0
        v_lshl_add_u32 v{VB}, v{T}, 3, v{VB}""")
        if wave_cols:
            a(f"s_lshl_b32 s{sT0}, s3, 6")
            a(f"s_add_u32 s{sT0}, s{sT0}, {base_lds}")
            a(f"v_add_u32 v{VB}, s{sT0}, v{VB}")
        else:
            a(f"v_add_u32 v{VB}, {base_lds}, v{VB}")
        return VB
    def convert_cu(self, home):
        a = self.a
        for ks0, n in ((0, 3), (3, 4)):
            self.rd_cu(home, [(ks0 + k) * 8192 for k in range(n)],
                       lambda k, nt, half: f"v[{VW + (k*2+nt)*4 + 2*half}:{VW + (k*2+nt)*4 + 2*half + 1}]")
            a("s_barrier")
            VB = self.VB[0]
            a(f"v_add_u32 v{VB}, {home}, v{VHB}")
            for k in range(n):
                for nt in range(2):
                    r = VW + (k * 2 + nt) * 4
                    a(f"ds_write_b128 v{VB}, v[{r}:{r+3}] offset:{(ks0 + k) * 8192 + nt * 1024}")
            a("s_waitcnt lgkmcnt(0)")
    def convert_t8(self, home, k0, n):
        a = self.a; VB, VC = self.VB[0], self.VB[1]
        self.tr_lane(VB, 5)
        a(f"v_add_u32 v{VB}, {home}, v{VB}")
        a(f"v_lshlrev_b32 v{VC}, 4, v0")
        a(f"v_add_u32 v{VC}, {home}, v{VC}")
        for k in range(n):
            for half in range(2):
                a(f"ds_read_b64_tr_b16 v[{VW + k*4 + 2*half}:{VW + k*4 + 2*half + 1}], v{VB} offset:{(k0 + k) * 1024 + half * 128}")
        a("s_waitcnt lgkmcnt(0)")
        for k in range(n):
            a(f"ds_write_b128 v{VC}, v[{VW + k*4}:{VW + k*4 + 3}] offset:{(k0 + k) * 1024}")
        a("s_waitcnt lgkmcnt(0)")

A0, A1 = VW, VW + 4
AT = [VW + 8 + 4 * k for k in range(4)]
WT = [VW + 24, VW + 28, VW + 32]
A2 = VW + 8

def gemv_order(nreg):
    R = list(range(nreg)); L = list(range(nreg, 18))
    seq = []
    while L:
        seq.append(R.pop(0)); seq.append(L.pop(0))
    return seq + R

TRA = VW + 20
def gemv_pre(a, lq, nreg, hreg):
    if nreg >= 18: return
    if hreg == VHD:
        a(f"v_mov_b32 v{TRA}, v{VHD}")
        a(f"v_xor_b32 v{TRA+1}, 32, v{VHD}")
        a(f"v_xor_b32 v{TRA+2}, 128, v{VHD}")
        a(f"v_xor_b32 v{TRA+3}, 160, v{VHD}")
    slots = [(ks, nt) for ks in range(nreg, 18) for nt in range(2)]
    for j in range(3): w_issue(a, lq, slots[j], j, nreg, hreg)
def w_issue(a, lq, sl, j, nreg, hreg):
    ks, nt = sl; t = WT[j % 3]
    if hreg == VHD:
        for half in range(2):
            lq.issue(("w", ks, nt), f"ds_read_b64_tr_b16 v[{t+2*half}:{t+2*half+1}], v{TRA + nt + 2*half} offset:{(ks - nreg)*8192 + half*1024}")
    else:
        lq.issue(("w", ks, nt), f"ds_read_b128 v[{t}:{t+3}], v{hreg} offset:{(ks - nreg)*8192 + nt*1024}")

def gemv18(a, lq, homes, nreg, hreg, act, tail=None):
    seq = gemv_order(nreg)
    slots = [(ks, nt) for ks in range(nreg, 18) for nt in range(2)]
    sj = {s: j for j, s in enumerate(slots)}
    nxt = 3
    NA = 3 if hreg == VHD else 4
    def act_issue(p):
        ks = seq[p]; t = AT[p % NA]
        lq.issue(("a", p), f"ds_read_b128 v[{t}:{t+3}], v{VACT} offset:{act - L_MISC + ks*64}")
    for p in range(NA - 1): act_issue(p)
    tail_done = tail is None
    for p, ks in enumerate(seq):
        if p + NA - 1 < 18: act_issue(p + NA - 1)
        lq.need(("a", p))
        At = f"v[{AT[p % NA]}:{AT[p % NA]+3}]"
        for nt, Ac in ((0, A0), (1, A1)):
            if ks >= nreg:
                lq.need(("w", ks, nt)); t = WT[sj[(ks, nt)] % 3]; B = f"v[{t}:{t+3}]"
            else:
                B = hs(homes[(ks, nt)])
            C = "0" if p == 0 else f"v[{Ac}:{Ac+3}]"
            a(f"v_mfma_f32_16x16x32_bf16 v[{Ac}:{Ac+3}], {At}, {B}, {C}")
            if ks >= nreg and nxt < len(slots):
                w_issue(a, lq, slots[nxt], nxt, nreg, hreg); nxt += 1
        if not tail_done and nxt >= len(slots) and (ks == 17 or (nreg >= 18 and p == 12)):
            tail(); tail_done = True
    if not tail_done: tail()

def gemv_opt(a, lq, act, home):
    L = a.newlabel("Lg3")
    a(f"s_cmp_eq_u32 s3, 3")
    a(f"s_cbranch_scc0 {L}")
    lq.drain()
    ATo = [AT[1], AT[2]]
    VH = AT[3]
    a(f"v_lshlrev_b32 v{VH}, 4, v0")
    a(f"v_add_u32 v{VH}, {home}, v{VH}")
    if home == H_D8:
        a(f"""v_lshrrev_b32 v{VH+1}, 4, v0
        v_bfe_u32 v{VH+2}, v0, 2, 2
        v_lshl_add_u32 v{VH+1}, v{VH+1}, 3, v{VH+2}
        v_lshlrev_b32 v{VH+1}, 5, v{VH+1}
        v_and_b32 v{VH+2}, 3, v0
        v_lshl_add_u32 v{VH+1}, v{VH+2}, 3, v{VH+1}
        v_add_u32 v{VH+1}, {home}, v{VH+1}""")
    def o_w(ks):
        t = WT[ks % 3]
        if home == H_D8 and ks >= NE_REG:
            for half in range(2):
                lq.issue(("o", ks), f"ds_read_b64_tr_b16 v[{t+2*half}:{t+2*half+1}], v{VH+1} offset:{ks*1024 + half*128}")
        else:
            lq.issue(("o", ks), f"ds_read_b128 v[{t}:{t+3}], v{VH} offset:{ks*1024}")
    def o_a(ks):
        t = ATo[ks % 2]
        lq.issue(("oa", ks), f"ds_read_b128 v[{t}:{t+3}], v{VACT} offset:{act - L_MISC + ks*64}")
    o_w(0); o_a(0); o_w(1); o_a(1); o_w(2)
    for ks in range(18):
        lq.need(("o", ks)); lq.need(("oa", ks))
        t = WT[ks % 3]; ta = ATo[ks % 2]
        C = "0" if ks == 0 else f"v[{A2}:{A2+3}]"
        a(f"v_mfma_f32_16x16x32_bf16 v[{A2}:{A2+3}], v[{ta}:{ta+3}], v[{t}:{t+3}], {C}")
        if ks + 2 < 18: o_a(ks + 2)
        if ks + 3 < 18: o_w(ks + 3)
    a.label(L)

def pack_pairs(a, src, dst, t1):
    a(f"v_mov_b32_dpp v{dst}, v{src} quad_perm:[0,0,2,2] row_mask:0xf bank_mask:0xf")
    a(f"v_mov_b32_dpp v{t1}, v{src} quad_perm:[1,1,3,3] row_mask:0xf bank_mask:0xf")
    a(f"v_cvt_pk_bf16_f32 v{dst}, v{dst}, v{t1}")

def gather_vec(a, opt, nreg):
    G = VW
    for k in range(8): a(f"s_add_u32 s{sRL+k}, s{nreg}, {k*2304}")
    lanes_lt(a, 36)
    L, Lr, Lok = a.newlabel("Lgv"), a.newlabel("Lgr"), a.newlabel("Lgk")
    a(f"s_mov_b32 s{sCN}, 0")
    a.label(L)
    for k in range(8):
        a(f"buffer_load_dwordx4 v[{G+4*k}:{G+4*k+3}], v{VVEC}, s[{S_WS}:{S_WS+3}], s{sRL+k} offen sc1")
    a(f"s_add_u32 s{sCN}, s{sCN}, 1")
    a(f"s_cmp_ge_u32 s{sCN}, {opt.spin}")
    a("s_waitcnt vmcnt(0)")
    a(f"s_cbranch_scc1 {Lr} ;light")
    a(f"v_max_u32 v{G+32}, v{G}, v{G+28}")
    a(f"v_cmp_eq_u32 vcc, -1, v{G+32}")
    a(f"s_cbranch_vccnz {L}")
    a.label(Lr)
    for c in range(4):
        a(f"v_add_f32 v{G+c}, v{G+c}, v{G+4+c}")
        a(f"v_add_f32 v{G+8+c}, v{G+8+c}, v{G+12+c}")
        a(f"v_add_f32 v{G+16+c}, v{G+16+c}, v{G+20+c}")
        a(f"v_add_f32 v{G+24+c}, v{G+24+c}, v{G+28+c}")
    for c in range(4):
        a(f"v_add_f32 v{G+c}, v{G+c}, v{G+8+c}")
        a(f"v_add_f32 v{G+16+c}, v{G+16+c}, v{G+24+c}")
    for c in range(4): a(f"v_add_f32 v{G+c}, v{G+c}, v{G+16+c}")
    a(f"v_add_f32 v{G+4}, v{G}, v{G+1}")
    a(f"v_add_f32 v{G+5}, v{G+2}, v{G+3}")
    a(f"v_cmp_u_f32 vcc, v{G+4}, v{G+5}")
    a(f"s_cbranch_vccz {Lok}")
    a(f"s_cmp_lt_u32 s{sCN}, {opt.spin}")
    a(f"s_cbranch_scc1 {L}")
    a.label(Lok)
    for c in range(4): a(f"v_add_f32 v{VXR+c}, v{VXR+c}, v{G+c}")
    lanes_all(a)

def act_stats(a, act):
    S1, S2, T = VW, VW + 1, VW + 2
    a(f"v_mov_b32 v{S1}, 0")
    a(f"v_mov_b32 v{S2}, 0")
    a(f"v_lshrrev_b32 v{T+2}, 1, v{VVEC}")
    a(f"v_add_u32 v{T+2}, {act}, v{T+2}")
    lanes_lt(a, 36)
    a(f"""v_cvt_pk_bf16_f32 v{T}, v{VXR}, v{VXR+1}
    v_cvt_pk_bf16_f32 v{T+1}, v{VXR+2}, v{VXR+3}
    v_add_f32 v{S1}, v{VXR}, v{VXR+1}
    v_mul_f32 v{S2}, v{VXR}, v{VXR}
    ds_write_b64 v{T+2}, v[{T}:{T+1}]
    v_add_f32 v{T+3}, v{VXR+2}, v{VXR+3}
    v_fmac_f32 v{S2}, v{VXR+1}, v{VXR+1}
    v_add_f32 v{S1}, v{S1}, v{T+3}
    v_fmac_f32 v{S2}, v{VXR+2}, v{VXR+2}
    v_fmac_f32 v{S2}, v{VXR+3}, v{VXR+3}""")
    lanes_all(a)
    for sh in (8, 4, 2, 1):
        a(f"v_add_f32_dpp v{S1}, v{S1}, v{S1} row_ror:{sh} row_mask:0xf bank_mask:0xf")
        a(f"v_add_f32_dpp v{S2}, v{S2}, v{S2} row_ror:{sh} row_mask:0xf bank_mask:0xf")
    a(f"v_add_f32_dpp v{S1}, v{S1}, v{S1} row_bcast:15 row_mask:0xa bank_mask:0xf")
    a(f"v_add_f32_dpp v{S2}, v{S2}, v{S2} row_bcast:15 row_mask:0xa bank_mask:0xf")
    a(f"v_add_f32_dpp v{S1}, v{S1}, v{S1} row_bcast:31 row_mask:0xc bank_mask:0xf")
    a(f"v_add_f32_dpp v{S2}, v{S2}, v{S2} row_bcast:31 row_mask:0xc bank_mask:0xf")
    a(f"""v_lshrrev_b32 v{T}, 4, v0
    s_lshl_b32 s{sT0}, s3, 5
    s_add_u32 s{sT0}, s{sT0}, {L_ST}
    v_lshl_add_u32 v{T}, v{T}, 3, s{sT0}
    ds_write_b64 v{T}, v[{S1}:{S2}]""")

MU, RS = WT[0], WT[0] + 1
def stats_tail(a, lq):
    R = WT[1]
    a(f"v_mov_b32 v{WT[0]+2}, {L_ST}")
    for w in range(4):
        lq.issue(("st", w), f"ds_read_b64 v[{R+2*w}:{R+2*w+1}], v{WT[0]+2} offset:{w*32 + 24}")
    return R
def stats_fin(a, lq, R):
    lq.need(("st", 3))
    a(f"""v_add_f32 v{R}, v{R}, v{R+2}
    v_add_f32 v{R+1}, v{R+1}, v{R+3}
    v_add_f32 v{R+4}, v{R+4}, v{R+6}
    v_add_f32 v{R+5}, v{R+5}, v{R+7}
    v_add_f32 v{R}, v{R}, v{R+4}
    v_add_f32 v{R+1}, v{R+1}, v{R+5}
    v_mul_f32 v{MU}, {hex(f32(1.0/576))}, v{R}
    v_mul_f32 v{RS}, {hex(f32(1.0/576))}, v{R+1}
    v_fma_f32 v{RS}, -v{MU}, v{MU}, v{RS}
    v_max_f32 v{RS}, 0, v{RS}
    v_add_f32 v{RS}, {hex(f32(1e-5))}, v{RS}
    v_rsq_f32 v{RS}, v{RS}""")

def stage_B(a, opt, fm=lambda: None):
    G = VW; ST = VW + 16; T = VW + 18
    a(f"""s_lshl_b32 s{sT1}, s{sKQ}, 2
    s_add_u32 s{sT1}, s{sT1}, s3
    s_mul_i32 s{sT1}, s{sT1}, {8*A_REC}
    s_mul_i32 s{sT2}, s{sN}, {WS_A_CH}
    s_add_u32 s{sT1}, s{sT1}, s{sT2}""")
    VO, VS, VO3 = T, T + 1, T + 2
    a(f"""v_lshrrev_b32 v{VO}, 5, v0
    v_mul_u32_u24 v{VO}, {A_REC}, v{VO}
    v_and_b32 v{VS}, 31, v0
    v_lshlrev_b32 v{VO3}, 4, v{VS}
    v_add_u32 v{VO}, v{VO3}, v{VO}
    v_and_b32 v{VS}, 7, v0
    v_min_u32 v{VS}, 6, v{VS}
    v_mul_u32_u24 v{VS}, {A_REC}, v{VS}
    v_add_u32 v{VS}, 512, v{VS}""")
    M, Wt, Lw, F = T + 3, T + 4, T + 5, T + 6
    def loads():
        a(f"buffer_load_dwordx2 v[{ST}:{ST+1}], v{VS}, s[{S_WS}:{S_WS+3}], s{sT1} offen sc1")
        for k in range(3):
            a(f"buffer_load_dwordx4 v[{G+4*k}:{G+4*k+3}], v{VO}, s[{S_WS}:{S_WS+3}], s{sT1} offen offset:{2*k*A_REC} sc1")
        a(f"buffer_load_dwordx4 v[{G+12}:{G+15}], v{VO3}, s[{S_WS}:{S_WS+3}], s{sT1} offen offset:{6*A_REC} sc1")
    poll(a, opt, loads, lambda: sent_check(a, list(range(G, G + 16)) + [ST, ST + 1], M))
    fm()
    Lf = a.newlabel("Lflag")
    a(f"s_and_b32 s{sT0}, s{sN}, 1")
    a(f"s_or_b32 s{sT0}, s{sT0}, s{sI}")
    a(f"s_or_b32 s{sT0}, s{sT0}, s3")
    a(f"s_cmp_eq_u32 s{sT0}, 0")
    a(f"s_cbranch_scc0 {Lf}")
    a(f"v_mov_b32 v{M}, 1")
    a(f"s_lshl_b32 s{sT0}, s{sN}, 1")
    a(f"s_add_u32 s{sT0}, s{sT0}, {WS_FLAG}")
    a(f"v_mov_b32 v{Wt}, s{sT0}")
    a("s_mov_b64 exec, 1")
    a(f"buffer_store_dword v{M}, v{Wt}, s[{S_WS}:{S_WS+3}], 0 offen sc0 sc1")
    a("s_mov_b64 exec, -1")
    a.label(Lf)
    a(f"v_mov_b32 v{M}, v{ST}")
    for sh in (4, 2, 1):
        a(f"v_max_f32_dpp v{M}, v{M}, v{M} row_ror:{sh} row_mask:0xf bank_mask:0xf")
    a(f"""v_sub_f32 v{Wt}, v{ST}, v{M}
    v_exp_f32 v{Wt}, v{Wt}
    v_and_b32 v{Lw}, 7, v0
    v_cmp_eq_u32 vcc, 7, v{Lw}
    v_mov_b32 v{Lw}, 0
    v_cndmask_b32 v{Wt}, v{Wt}, v{Lw}, vcc
    v_mul_f32 v{Lw}, v{Wt}, v{ST+1}""")
    for sh in (4, 2, 1):
        a(f"v_add_f32_dpp v{Lw}, v{Lw}, v{Lw} row_ror:{sh} row_mask:0xf bank_mask:0xf")
    a(f"v_rcp_f32 v{Lw}, v{Lw}")
    a(f"v_mul_f32 v{Wt}, v{Wt}, v{Lw}")
    for s in range(7): a(f"v_readlane_b32 s{sRL+s}, v{Wt}, {s}")
    for k in range(4): a(f"v_mov_b32 v{F+k}, s{sRL+2*k}")
    for k in range(3):
        a(f"v_mov_b32 v{M}, s{sRL+2*k+1}")
        a(f"v_cndmask_b32 v{F+k}, v{F+k}, v{M}, s[{sHI}:{sHI+1}]")
    a(f"v_mov_b32 v{M}, 0")
    a(f"v_cndmask_b32 v{F+3}, v{F+3}, v{M}, s[{sHI}:{sHI+1}]")
    for c in range(4): a(f"v_mul_f32 v{G+c}, v{G+c}, v{F}")
    for k in range(1, 4):
        for c in range(4): a(f"v_fmac_f32 v{G+c}, v{G+4*k+c}, v{F+k}")
    for c in range(4): a(f"v_mov_b32 v{G+4+c}, v{G+c}")
    for c in range(4): a(f"v_permlane32_swap_b32 v{G+c}, v{G+4+c}")
    for c in range(4): a(f"v_add_f32 v{G+c}, v{G+c}, v{G+4+c}")
    a(f"v_cvt_pk_bf16_f32 v{G+8}, v{G}, v{G+1}")
    a(f"v_cvt_pk_bf16_f32 v{G+9}, v{G+2}, v{G+3}")
    a(f"""v_and_b32 v{M}, 31, v0
    s_lshl_b32 s{sT0}, s3, 8
    s_add_u32 s{sT0}, s{sT0}, {L_OACT}
    v_lshl_add_u32 v{M}, v{M}, 3, s{sT0}""")
    lanes_lt(a, 32)
    a(f"ds_write_b64 v{M}, v[{G+8}:{G+9}]")
    lanes_all(a)
    BT = VW
    a(f"s_sub_u32 s{sT0}, s{sT0}, {L_MISC}")
    a(f"v_add_u32 v{M}, s{sT0}, v{VACT}")
    a("s_waitcnt lgkmcnt(0)")
    for ks in range(4): a(f"ds_read_b128 v[{BT+4*ks}:{BT+4*ks+3}], v{M} offset:{ks*64}")
    fm()
    ACC = [VW + 16, VW + 20, VW + 24]
    OUT = VW + 28
    masks = [None, sG1, sG2, sG3]
    pend = []
    def fin(nt, ac):
        r, g = nt >> 2, nt & 3
        if g == 0: a(f"v_mov_b32 v{OUT+r}, v{ac}")
        else: a(f"v_cndmask_b32 v{OUT+r}, v{OUT+r}, v{ac}, s[{masks[g]}:{masks[g]+1}]")
    for grp in range(3):
        for ks in range(4):
            if grp == 0: a(f"s_waitcnt lgkmcnt({3-ks})")
            for j in range(3):
                nt = grp * 3 + j; ac = ACC[j]
                C = "0" if ks == 0 else f"v[{ac}:{ac+3}]"
                a(f"v_mfma_f32_16x16x32_bf16 v[{ac}:{ac+3}], v[{BT+4*ks}:{BT+4*ks+3}], {hs(H_B[(ks, nt)])}, {C}")
        for j in range(3): fin(grp * 3 + j, ACC[j])
    fm()
    a(f"""s_mul_i32 s{sT0}, s3, 576
    s_add_u32 s{sT0}, s{sT0}, {L_RED}
    v_lshl_add_u32 v{M}, v0, 2, s{sT0}
    ds_write_b32 v{M}, v{OUT}
    ds_write_b32 v{M}, v{OUT+1} offset:256""")
    lanes_lt(a, 16)
    a(f"ds_write_b32 v{M}, v{OUT+2} offset:512")
    lanes_all(a)
    a("s_waitcnt lgkmcnt(0)")
    a("s_barrier")
    L = a.newlabel("Lbp")
    a("s_cmp_eq_u32 s3, 0")
    a(f"s_cbranch_scc0 {L}")
    a(f"v_lshlrev_b32 v{M}, 4, v0")
    a(f"v_add_u32 v{M+1}, {L_RED}, v{M}")
    for w in range(4): a(f"ds_read_b128 v[{BT+4*w}:{BT+4*w+3}], v{M+1} offset:{w*576}")
    a(f"""s_mul_i32 s{sT0}, s{sN}, {WS_PV_CH}
    s_mul_i32 s{sT1}, s{sKQ}, 2304
    s_add_u32 s{sT0}, s{sT0}, s{sT1}
    s_mul_i32 s{sT1}, s{sNQ}, 576
    s_add_u32 s{sT0}, s{sT0}, s{sT1}
    s_add_u32 s{sT0}, s{sT0}, {WS_PB}""")
    a("s_waitcnt lgkmcnt(0)")
    for c in range(4):
        a(f"v_add_f32 v{BT+c}, v{BT+c}, v{BT+4+c}")
        a(f"v_add_f32 v{BT+8+c}, v{BT+8+c}, v{BT+12+c}")
    for c in range(4): a(f"v_add_f32 v{BT+c}, v{BT+c}, v{BT+8+c}")
    lanes_lt(a, 36)
    pub_flags(a, lambda fl: a(f"buffer_store_dwordx4 v[{BT}:{BT+3}], v{M}, s[{S_WS}:{S_WS+3}], s{sT0} offen {fl}"))
    lanes_all(a)
    a.label(L)

def load_x_lds(a, bcode):
    a(bcode)
    T = VW
    a(f"v_lshrrev_b32 v{T+2}, 1, v{VVEC}")
    a(f"s_add_u32 s{sT0}, s{sT0}, {L_XIN}")
    a(f"v_add_u32 v{T+2}, s{sT0}, v{T+2}")
    a(f"ds_read_b64 v[{T}:{T+1}], v{T+2}")
    a("s_waitcnt lgkmcnt(0)")
    a(f"""v_lshlrev_b32 v{VXR}, 16, v{T}
    v_and_b32 v{VXR+1}, 0xffff0000, v{T}
    v_lshlrev_b32 v{VXR+2}, 16, v{T+1}
    v_and_b32 v{VXR+3}, 0xffff0000, v{T+1}""")

def fill_ones(a, act):
    T = VW
    a(f"""v_mov_b32 v{T}, 0x3f803f80
    v_mov_b32 v{T+1}, 0x3f803f80
    v_lshrrev_b32 v{T+2}, 1, v{VVEC}
    v_add_u32 v{T+2}, {act}, v{T+2}""")
    lanes_lt(a, 36)
    a(f"ds_write_b64 v{T+2}, v[{T}:{T+1}]")
    lanes_all(a)
    a("s_waitcnt lgkmcnt(0)")

def select_tiles(a, dst, n3):
    a(f"v_mov_b32 v{dst}, v{A0}")
    a(f"v_cndmask_b32 v{dst}, v{dst}, v{A1}, s[{sG1}:{sG1+1}]")
    if n3: a(f"v_cndmask_b32 v{dst}, v{dst}, v{A2}, s[{sG2}:{sG2+1}]")

def chain(a, opt, st):
    a(f"""s_lshr_b32 s{sI}, s2, 3
    s_lshr_b32 s{sKQ}, s{sI}, 2
    s_and_b32 s{sNQ}, s{sI}, 3
    s_waitcnt lgkmcnt(0)""")
    srd(a, S_WS, P_WS, WS_SIZE)
    srd(a, S_DBG, P_DBG, 256)
    srd(a, S_WQ, P_WQ, 576*4096*2)
    srd(a, S_WO, P_WO, 4096*576*2)
    srd(a, S_W1, P_W1, 576*4608*2)
    srd(a, S_W2, P_W2, 4608*576*2)
    srd(a, S_X, P_X, 2304)
    srd(a, S_B1, P_B1, 9216)
    srd(a, S_B2, P_B2, 1152)
    srd(a, S_OUT, P_OUT, 2304)
    a(f"""s_mov_b32 s{sG1}, 0xffff0000
    s_mov_b32 s{sG1+1}, 0
    s_mov_b32 s{sG2}, 0
    s_mov_b32 s{sG2+1}, 0x0000ffff
    s_mov_b32 s{sG3}, 0
    s_mov_b32 s{sG3+1}, 0xffff0000
    s_mov_b32 s{sHI}, 0
    s_mov_b32 s{sHI+1}, -1
    s_lshl_b32 s{sW2K}, s3, 11
    s_mul_i32 s{sW9K}, s3, 9216""")
    if opt.stamps:
        for k in range(18): a(f"s_mov_b32 s{84+k}, 0")
    if opt.initmark:
        a("s_memrealtime s[82:83]")
        a("s_waitcnt lgkmcnt(0)")
        a("s_mov_b32 s101, s82")
    vm = VM(a)
    sg = Stager(a, opt, vm)
    T = VW
    if opt.cpf: code_prefetch(a, "L_chain_rest", "L_exit", 4, VW + 34, 252, 1, sb=70, dk="a")
    a.label("L_chain_rest")
    a(f"""s_mul_i32 s{sT0}, s3, 576
    v_lshl_add_u32 v{VVEC}, v0, 4, s{sT0}        ; (144w+4l)*4
    v_lshrrev_b32 v{T}, 4, v0
    v_lshlrev_b32 v{VACT}, 4, v{T}
    v_add_u32 v{VACT}, {L_MISC}, v{VACT}
    v_lshl_add_u32 v{VHB}, v0, 4, s{sW2K}""")
    sg.tr_lane_sw(VHD, True)
    a(f"v_add_u32 v{VHD}, {H_DL}, v{VHD}")
    erow = f"s_lshl_b32 s{sROW}, s{sI}, 8"
    brow = f"""s_lshl_b32 s{sROW}, s{sKQ}, 2
    s_add_u32 s{sROW}, s{sROW}, s3
    s_mul_i32 s{sROW}, s{sROW}, {128*1152}
    s_mul_i32 s{sT0}, s{sNQ}, 288
    s_add_u32 s{sROW}, s{sROW}, s{sT0}"""
    crow = f"s_mul_i32 s{sROW}, s{sI}, 288"
    drow = f"""s_mul_i32 s{sROW}, s{sKQ}, {576*1152}
    s_mul_i32 s{sT0}, s{sNQ}, 288
    s_add_u32 s{sROW}, s{sROW}, s{sT0}"""
    MAT = {"E": (S_WQ, 8192, erow, H_E), "C": (S_W1, 9216, crow, H_C), "D": (S_W2, 1152, drow, H_D), "B": (S_WO, 1152, brow, H_B)}
    brow = f"""s_mul_i32 s{sROW}, s{sKQ}, {4*128*1152}
    s_mul_i32 s{sT0}, s{sNQ}, 288
    s_add_u32 s{sROW}, s{sROW}, s{sT0}"""
    MAT["B"] = (S_WO, 1152, brow, H_B)
    order = [("B", ks, w) for ks in range(4) for w in range(4)] + [("C", k, None) for k in range(18)] + [("D", k, None) for k in range(NE_REG)]
    SLOT = [56 * 1024 + k * 9216 for k in range(6)] + [112 * 1024, 121 * 1024, 130 * 1024, 139 * 1024]
    LAST = [10**6] * 6 + [33, 42, 15, 24]
    ring = {"next": 0, "slot_of": {}, "free": list(range(10))}
    VTCH = VW + 15
    touched = [0]
    def touch_setup():
        a(f"""v_min_u32 v{VTCH}, 17, v0
        s_mul_i32 s{sT0}, s3, 18
        v_add_u32 v{VTCH}, s{sT0}, v{VTCH}
        v_lshlrev_b32 v{VTCH}, 7, v{VTCH}""")
    def touch(upto):
        if not opt.touch: return
        first = True
        while touched[0] < min(upto, len(order)):
            if first: touch_setup(); first = False
            (m, ks, w) = order[touched[0]]
            srd_ = MAT[m][0]
            if m == "C":
                a(f"s_mul_i32 s{sT0}, s{sI}, 9216")
                a(f"s_add_u32 s{sT0}, s{sT0}, {ks * 32 * 9216}")
            else:
                base_rows = (w * 128 if m == "B" else 0) + ks * 32
                a(f"s_mul_i32 s{sT0}, s{sKQ}, {(512 if m == 'B' else 576) * 1152}")
                a(f"s_mul_i32 s{sT1}, s{sNQ}, 9216")
                a(f"s_add_u32 s{sT0}, s{sT0}, s{sT1}")
                a(f"s_add_u32 s{sT0}, s{sT0}, {base_rows * 1152}")
            vm.issue("touch", f"buffer_load_dword a255, v{VTCH}, s[{srd_}:{srd_+3}], s{sT0} offen {opt.tflags}")
            touched[0] += 1
    def issue_images():
        while ring["next"] < len(order):
            j = ring["next"]
            cand = [sl for sl in ring["free"] if j <= LAST[sl]]
            if not cand: return
            sl = cand[-1] if LAST[cand[-1]] < 10**6 else cand[0]
            restricted = [c for c in cand if LAST[c] < 10**6]
            sl = restricted[0] if restricted else cand[0]
            ring["free"].remove(sl); ring["slot_of"][j] = sl
            (m, ks, w) = order[j]
            srd_, stride, rowc, _ = MAT[m]
            sg.select9(m, stride, rowc)
            off = (ks * 32 + (w * 128 if w is not None else 0)) * stride
            sg.dma9(("i", j), srd_, off, SLOT[sl])
            ring["next"] += 1
            touch(ring["next"] + opt.touch)
    def step(j):
        if j >= len(order): return
        vm.wait(("i", j))
        a("s_barrier")
        if j >= 1:
            ring["free"].append(ring["slot_of"][j - 1])
            issue_images()
        base = SLOT[ring["slot_of"][j]]
        (m, ks, w) = order[j]
        if m == "B":
            L = a.newlabel("Lcb")
            a(f"s_cmp_eq_u32 s3, {w}")
            a(f"s_cbranch_scc0 {L}")
            VB = sg.tr288(base, False)
            for nt in range(9):
                for half in range(2):
                    a(f"ds_read_b64_tr_b16 {hs2(H_B[(ks, nt)], half)}, v{VB} offset:{nt * 32 + half * 1152}")
                if nt == 5: a("s_waitcnt lgkmcnt(0)")
            a.label(L)
        else:
            VB = sg.tr288(base, True)
            H = MAT[m][3]
            for nt in range(2):
                for half in range(2):
                    a(f"ds_read_b64_tr_b16 {hs2(H[(ks, nt)], half)}, v{VB} offset:{nt * 32 + half * 1152}")
            L = a.newlabel("Lc8")
            a("s_cmp_eq_u32 s3, 3")
            a(f"s_cbranch_scc0 {L}")
            for half in range(2):
                a(f"ds_read_b64_tr_b16 v[{VW + 2*half}:{VW + 2*half + 1}], v{VB} offset:{64 + half * 1152}")
            a(f"v_lshlrev_b32 v{VW+4}, 4, v0")
            a(f"v_add_u32 v{VW+4}, {(H_C8 if m == 'C' else H_D8) + ks * 1024}, v{VW+4}")
            a("s_waitcnt lgkmcnt(0)")
            a(f"ds_write_b128 v{VW+4}, v[{VW}:{VW+3}]")
            a.label(L)
        a("s_waitcnt lgkmcnt(0)")
        if opt.initmark == 2 and j % 3 == 2 and j // 3 < 14:
            a("s_memrealtime s[82:83]"); a("s_waitcnt lgkmcnt(0)"); a(f"s_mov_b32 s{86+j//3}, s82")
    a(f"""v_mov_b32 v{T+4}, -1
    v_mov_b32 v{T+5}, -1
    v_mov_b32 v{T+6}, -1
    v_mov_b32 v{T+7}, -1
    v_lshlrev_b32 v{T+3}, 4, v0
    s_lshl_b32 s{sT0}, s3, 13
    s_lshl_b32 s{sT1}, s{sI}, 8
    s_add_u32 s{sT0}, s{sT0}, s{sT1}
    s_add_u32 s{sT0}, s{sT0}, {WS_Q}""")
    lanes_lt(a, 16)
    vm.issue("arm", f"buffer_store_dwordx4 v[{T+4}:{T+7}], v{T+3}, s[{S_WS}:{S_WS+3}], s{sT0} offen sc0 sc1")
    a(f"""s_mul_i32 s{sT0}, s3, {WS_PV_CH}
    s_mul_i32 s{sT1}, s{sKQ}, 2304
    s_add_u32 s{sT0}, s{sT0}, s{sT1}
    s_mul_i32 s{sT1}, s{sNQ}, 576
    s_add_u32 s{sT0}, s{sT0}, s{sT1}
    s_add_u32 s{sT1}, s{sT0}, {WS_PD}
    s_add_u32 s{sT0}, s{sT0}, {WS_PB}""")
    lanes_lt(a, 36)
    vm.issue("arm", f"buffer_store_dwordx4 v[{T+4}:{T+7}], v{T+3}, s[{S_WS}:{S_WS+3}], s{sT0} offen sc0 sc1")
    vm.issue("arm", f"buffer_store_dwordx4 v[{T+4}:{T+7}], v{T+3}, s[{S_WS}:{S_WS+3}], s{sT1} offen sc0 sc1")
    a(f"v_lshrrev_b32 v{T+8}, 1, v{VVEC}")
    vm.issue("small", f"buffer_load_dwordx2 v[{T+10}:{T+11}], v{T+8}, s[{S_X}:{S_X+3}], 0 offen")
    vm.issue("small", f"buffer_load_dwordx2 v[{T+12}:{T+13}], v{T+8}, s[{S_X}:{S_X+3}], 0 offen offset:1152")
    a(f"""s_mul_i32 s{sT0}, s3, {WS_H_CH}
    s_mul_i32 s{sT1}, s{sI}, 288
    s_add_u32 s{sT0}, s{sT0}, s{sT1}
    s_add_u32 s{sT0}, s{sT0}, {WS_H}""")
    lanes_lt(a, 18)
    vm.issue("arm", f"buffer_store_dwordx4 v[{T+4}:{T+7}], v{T+3}, s[{S_WS}:{S_WS+3}], s{sT0} offen sc0 sc1")
    a(f"s_lshl_b32 s{sT0}, s{sI}, 7")
    a(f"s_add_u32 s{sT0}, s{sT0}, {WS_FLAG}")
    lanes_lt(a, 1)
    vm.issue("arm", f"buffer_store_dwordx4 v[{T+4}:{T+7}], v{T+3}, s[{S_WS}:{S_WS+3}], s{sT0} offen sc0 sc1")
    lanes_all(a)
    a(f"""s_mul_i32 s{sT0}, s{sI}, 288
    s_lshl_b32 s{sT1}, s3, 6
    s_add_u32 s{sT0}, s{sT0}, s{sT1}
    v_lshlrev_b32 v{T+9}, 1, v0""")
    vm.issue("small", f"buffer_load_ushort v{VBB}, v{T+9}, s[{S_B1}:{S_B1+3}], s{sT0} offen")
    a(f"""s_mul_i32 s{sT0}, s{sNQ}, 288
    s_add_u32 s{sT0}, s{sT0}, s{sT1}""")
    vm.issue("small", f"buffer_load_ushort v{T+14}, v{T+9}, s[{S_B2}:{S_B2+3}], s{sT0} offen")
    sg.select("E", 8192, erow)
    for ks in range(NE_REG):
        sg.dma_cu("ereg", S_WQ, 8192, ks, 56 * 1024 + ks * 8192)
    for ks in range(NE_REG, 18):
        sg.dma_cu("ehome", S_WQ, 8192, ks, H_EL + (ks - NE_REG) * 8192)
    touch(10)
    vm.wait("small")
    a(f"""v_lshlrev_b32 v{VBB}, 16, v{VBB}
    v_mov_b32 v{T+9}, 0
    s_cmp_eq_u32 s{sKQ}, 0
    s_cselect_b64 vcc, -1, 0
    v_cndmask_b32 v{T+14}, v{T+9}, v{T+14}, vcc
    v_or_b32 v{VBB}, v{VBB}, v{T+14}
    v_add_u32 v{T+8}, {L_XIN}, v{T+8}""")
    lanes_lt(a, 36)
    a(f"ds_write_b64 v{T+8}, v[{T+10}:{T+11}]")
    a(f"ds_write_b64 v{T+8}, v[{T+12}:{T+13}] offset:1152")
    lanes_all(a)
    fill_ones(a, L_ACTA)
    a("s_barrier")
    L = a.newlabel("Lci")
    a("s_cmp_eq_u32 s3, 0")
    a(f"s_cbranch_scc0 {L}")
    a(f"""s_getreg_b32 s{sT0}, hwreg(HW_REG_XCC_ID)
    s_and_b32 s{sT0}, s{sT0}, 7
    s_lshl_b32 s{sT0}, s{sT0}, 3
    s_lshl_b64 s[{sRL}:{sRL+1}], 1, s{sT0}
    v_mov_b32 v{T}, s{sRL}
    v_mov_b32 v{T+1}, s{sRL+1}
    v_mov_b32 v{T+2}, 128
    s_mov_b64 exec, 1
    buffer_atomic_add_x2 v[{T}:{T+1}], v{T+2}, s[{S_DBG}:{S_DBG+3}], 0 offen sc1
    s_mov_b64 exec, -1""")
    a.label(L)
    vm.wait("ereg")
    a("s_barrier")
    for k0, n in ((0, 6), (6, 5)):
        sg.rd_cu(56 * 1024 + k0 * 8192, [k * 8192 for k in range(n)], lambda k, nt, half, k0=k0: hs2(H_E[(k0 + k, nt)], half))
    a("s_barrier")
    sg.setup()
    issue_images()
    vm.wait("ehome")
    a("s_barrier")
    sg.convert_cu(H_EL)
    a("s_barrier")
    sg.setup()
    for j in range(0, 4): step(j)
    lq = LQ(a)
    gemv_pre(a, lq, NE_REG, VHB)
    gemv18(a, lq, H_E, NE_REG, VHB, L_ACTA)
    select_tiles(a, VCSE, False)
    if opt.stamps != 3: st.mark()
    sg.setup()
    for j in range(4, 8): step(j)
    a(f"s_mov_b32 s{sIT}, 0")
    a("s_barrier")
    a("s_branch L_q1")
    a.label("L_citer")
    a(f"s_sub_u32 s{sN}, s{sIT}, 2")
    Lx = a.newlabel("Lx")
    a(f"s_bitcmp1_b32 s{sN}, 0")
    a(f"s_cbranch_scc1 {Lx}")
    load_x_lds(a, f"s_mul_i32 s{sT0}, s{sN}, 576")
    a.label(Lx)
    if opt.pretouch:
        Lpt = a.newlabel("Lpt")
        a(f"s_cmp_eq_u32 s3, 1")
        a(f"s_cbranch_scc0 {Lpt}")
        D_, O_ = VW + 35, VW + 34
        for (base, ch, nlines) in ((WS_PB, WS_PV_CH, 144), (WS_PD, WS_PV_CH, 144), (WS_H, WS_H_CH, 72)):
            a(f"s_mul_i32 s{sT0}, s{sN}, {ch}")
            a(f"s_add_u32 s{sT0}, s{sT0}, {base}")
            for k in range((nlines + 63) // 64):
                a(f"v_add_u32 v{O_}, {64*k}, v0")
                a(f"v_min_u32 v{O_}, {nlines-1}, v{O_}")
                a(f"v_lshlrev_b32 v{O_}, 7, v{O_}")
                a(f"buffer_load_dword v{D_}, v{O_}, s[{S_WS}:{S_WS+3}], s{sT0} offen sc1")
        a.label(Lpt)
    fine = opt.stamps == 3
    fm = (lambda: st.mark_if(sN, opt.finen)) if fine else (lambda: None)
    if fine:
        class _N:
            def mark(self, *x): fm()
        stc = _N()
    else: stc = st
    stage_B(a, opt, fm)
    stc.mark(sN, 4)
    a(f"""s_mul_i32 s{sT2}, s{sN}, {WS_PV_CH}
    s_add_u32 s{sT2}, s{sT2}, {WS_PB}""")
    gather_vec(a, opt, sT2)
    fm()
    act_stats(a, L_ACTA)
    a("s_waitcnt lgkmcnt(0)")
    a("s_barrier")
    fm()
    lq = LQ(a)
    R = [None]
    def tl(): R[0] = stats_tail(a, lq)
    gemv18(a, lq, H_C, 18, None, L_ACTA, tail=tl)
    stats_fin(a, lq, R[0])
    a(f"v_readfirstlane_b32 s{sRL}, v{MU}")
    a(f"v_readfirstlane_b32 s{sRL+1}, v{RS}")
    gemv_opt(a, lq, L_ACTA, H_C8)
    fm()
    Hv, H2, H3 = AT[1], AT[1] + 1, AT[1] + 2
    select_tiles(a, Hv, True)
    k1 = -2.0 * math.sqrt(2.0 / math.pi) * math.log2(math.e)
    a(f"""v_mul_f32 v{H2}, s{sRL}, v{VCSC}
    v_and_b32 v{H3}, 0xffff0000, v{VBB}
    v_sub_f32 v{Hv}, v{Hv}, v{H2}
    v_fma_f32 v{Hv}, v{Hv}, s{sRL+1}, v{H3}
    v_mul_f32 v{H2}, v{Hv}, v{Hv}
    v_mov_b32 v{H3}, {hex(f32(k1))}
    v_mov_b32 v{H3+1}, {hex(f32(k1*0.044715))}
    v_fma_f32 v{H2}, v{H2}, v{H3+1}, v{H3}
    v_mul_f32 v{H2}, v{H2}, v{Hv}
    v_exp_f32 v{H2}, v{H2}
    v_add_f32 v{H2}, 1.0, v{H2}
    v_rcp_f32 v{H2}, v{H2}
    v_mul_f32 v{Hv}, v{Hv}, v{H2}""")
    pack_pairs(a, Hv, H2, H3)
    a(f"""s_mul_i32 s{sT0}, s{sN}, {WS_H_CH}
    s_mul_i32 s{sT1}, s{sI}, 288
    s_add_u32 s{sT0}, s{sT0}, s{sT1}
    s_lshl_b32 s{sT1}, s3, 6
    s_add_u32 s{sT0}, s{sT0}, s{sT1}
    s_add_u32 s{sT0}, s{sT0}, {WS_H}
    v_lshlrev_b32 v{H3}, 1, v0
    s_mov_b32 exec_lo, 0x55555555
    s_cmp_eq_u32 s3, 3
    s_cselect_b32 exec_hi, 0x5555, 0""")
    pub_flags(a, lambda fl: a(f"buffer_store_dword v{H2}, v{H3}, s[{S_WS}:{S_WS+3}], s{sT0} offen {fl}"))
    lanes_all(a)
    stc.mark(sN, 4)
    G = VW
    a(f"""s_mul_i32 s{sT1}, s{sN}, {WS_H_CH}
    s_mul_i32 s{sT0}, s{sKQ}, 1152
    s_add_u32 s{sT1}, s{sT1}, s{sT0}
    s_mul_i32 s{sT0}, s3, 288
    s_add_u32 s{sT1}, s{sT1}, s{sT0}
    s_add_u32 s{sT1}, s{sT1}, {WS_H}
    v_lshlrev_b32 v{G+5}, 4, v0
    s_add_u32 s{sT0}, s{sT0}, {L_ACTB}
    v_add_u32 v{G+6}, s{sT0}, v{G+5}""")
    lq = LQ(a)
    gemv_pre(a, lq, NE_REG, VHD)
    lanes_lt(a, 18)
    poll(a, opt, lambda: a(f"buffer_load_dwordx4 v[{G}:{G+3}], v{G+5}, s[{S_WS}:{S_WS+3}], s{sT1} offen sc1"),
         lambda: sent_check(a, range(G, G + 4), G + 4))
    a(f"ds_write_b128 v{G+6}, v[{G}:{G+3}]")
    lanes_all(a)
    fm()
    lq.drain(); a("s_waitcnt lgkmcnt(0)")
    a("s_barrier")
    gemv18(a, lq, H_D, NE_REG, VHD, L_ACTB)
    gemv_opt(a, lq, L_ACTB, H_D8)
    fm()
    select_tiles(a, Hv, True)
    a(f"v_lshlrev_b32 v{H2}, 16, v{VBB}")
    a(f"v_add_f32 v{Hv}, v{Hv}, v{H2}")
    a(f"""s_mul_i32 s{sT0}, s{sN}, {WS_PV_CH}
    s_mul_i32 s{sT1}, s{sKQ}, 2304
    s_add_u32 s{sT0}, s{sT0}, s{sT1}
    s_mul_i32 s{sT1}, s{sNQ}, 576
    s_add_u32 s{sT0}, s{sT0}, s{sT1}
    s_lshl_b32 s{sT1}, s3, 7
    s_add_u32 s{sT0}, s{sT0}, s{sT1}
    s_add_u32 s{sT0}, s{sT0}, {WS_PD}
    v_lshlrev_b32 v{H3}, 2, v0
    s_mov_b32 exec_lo, -1
    s_cmp_eq_u32 s3, 3
    s_cselect_b32 exec_hi, 0xffff, 0""")
    pub_flags(a, lambda fl: a(f"buffer_store_dword v{Hv}, v{H3}, s[{S_WS}:{S_WS+3}], s{sT0} offen {fl}"))
    lanes_all(a)
    stc.mark(sN, 4)
    a(f"""s_mul_i32 s{sT2}, s{sN}, {WS_PV_CH}
    s_add_u32 s{sT2}, s{sT2}, {WS_PD}""")
    gather_vec(a, opt, sT2)
    fm()
    Lodd = a.newlabel("Lodd")
    a(f"s_bitcmp1_b32 s{sN}, 0")
    a(f"s_cbranch_scc1 {Lodd}")
    a(f"s_lshr_b32 s{sT2}, s{sN}, 1")
    a(f"s_add_u32 s{sQI}, s{sT2}, 2")
    a("s_branch L_E")
    a.label("L_q1")
    load_x_lds(a, f"s_mul_i32 s{sT0}, s{sIT}, 1152")
    a(f"s_mov_b32 s{sQI}, s{sIT}")
    a.label("L_E")
    act_stats(a, L_ACTA)
    lq = LQ(a)
    gemv_pre(a, lq, NE_REG, VHB)
    lq.drain(); a("s_waitcnt lgkmcnt(0)")
    a("s_barrier")
    def tl2(): R[0] = stats_tail(a, lq)
    if fine: st.mark_if(sIT, 4)
    gemv18(a, lq, H_E, NE_REG, VHB, L_ACTA, tail=tl2)
    stats_fin(a, lq, R[0])
    if fine: st.mark_if(sIT, 4)
    select_tiles(a, Hv, False)
    a(f"""v_mul_f32 v{H2}, v{MU}, v{VCSE}
    v_sub_f32 v{Hv}, v{Hv}, v{H2}
    v_mul_f32 v{Hv}, v{Hv}, v{RS}""")
    pack_pairs(a, Hv, H2, H3)
    a(f"""s_lshl_b32 s{sT0}, s{sQI}, 13
    s_lshl_b32 s{sT1}, s{sI}, 8
    s_add_u32 s{sT0}, s{sT0}, s{sT1}
    s_lshl_b32 s{sT1}, s3, 6
    s_add_u32 s{sT0}, s{sT0}, s{sT1}
    s_add_u32 s{sT0}, s{sT0}, {WS_Q}
    v_lshlrev_b32 v{H3}, 1, v0
    s_mov_b32 exec_lo, 0x55555555
    s_mov_b32 exec_hi, 0
    buffer_store_dword v{H2}, v{H3}, s[{S_WS}:{S_WS+3}], s{sT0} offen sc0 sc1""")
    lanes_all(a)
    if fine: st.mark_if(sIT, 4)
    elif opt.initmark != 2: st.mark(sIT, 5)
    a(f"s_add_u32 s{sIT}, s{sIT}, 1")
    a(f"s_cmp_eq_u32 s{sIT}, 1")
    Lq = a.newlabel("Lq1b")
    a(f"s_cbranch_scc0 {Lq}")
    sg.setup()
    for j in range(8, 12): step(j)
    a("s_branch L_q1")
    a.label(Lq)
    a(f"s_cmp_eq_u32 s{sIT}, 2")
    a(f"s_cbranch_scc0 L_citer")
    sg.setup()
    for j in range(12, len(order)): step(j)
    a("s_barrier")
    sg.setup()
    a(f"v_mov_b32 v{T+3}, 128")
    a(f"v_mov_b32 v{T+7}, 0")
    vm.issue("cnt", f"buffer_load_dwordx2 v[{T+4}:{T+5}], v{T+3}, s[{S_DBG}:{S_DBG+3}], 0 offen sc1")
    vm.issue("cnt", f"buffer_load_dword v{T+6}, v{T+7}, s[{S_DBG}:{S_DBG+3}], 0 offen sc1")
    sg.select("D", 1152, drow)
    for ks in range(NE_REG, 18):
        sg.dma_cu("dhome", S_W2, 1152, ks, H_DL + (ks - NE_REG) * 8192)
    L3 = a.newlabel("Lo3")
    a(f"s_cmp_eq_u32 s3, 3")
    a(f"s_cbranch_scc0 {L3}")
    for ks in range(NE_REG, 18): sg.dma_t8(S_W2, 1152, ks, H_D8 + ks * 1024)
    a.label(L3)
    if opt.eflag:
        Lf = a.newlabel("Leflag")
        a(f"s_or_b32 s{sT0}, s{sI}, s3")
        a(f"s_cmp_eq_u32 s{sT0}, 0")
        a(f"s_cbranch_scc0 {Lf}")
        a(f"v_mov_b32 v{T+9}, 1")
        a(f"v_mov_b32 v{T+10}, {WS_FLAG}")
        a("s_mov_b64 exec, 1")
        a(f"buffer_store_dword v{T+9}, v{T+10}, s[{S_WS}:{S_WS+3}], 0 offen sc0 sc1")
        a("s_mov_b64 exec, -1")
        a.label(Lf)
    vm.wait("cnt")
    Lsp, Lok = a.newlabel("Lcs"), a.newlabel("Lco")
    a(f"s_mov_b32 s{sCN}, 0")
    a.label(Lsp)
    a(f"""v_sad_u8 v{T+8}, v{T+4}, 0, 0
    v_sad_u8 v{T+8}, v{T+5}, 0, v{T+8}
    v_readfirstlane_b32 s{sT0}, v{T+8}
    v_readfirstlane_b32 s{sT1}, v{T+6}
    s_cmp_ge_u32 s{sT0}, 32
    s_cselect_b32 s{sT0}, 1, 0
    s_cmp_ge_u32 s{sT1}, 224
    s_cselect_b32 s{sT0}, s{sT0}, 0
    s_cmp_eq_u32 s{sT0}, 1
    s_cbranch_scc1 {Lok}
    buffer_load_dwordx2 v[{T+4}:{T+5}], v{T+3}, s[{S_DBG}:{S_DBG+3}], 0 offen sc1
    buffer_load_dword v{T+6}, v{T+7}, s[{S_DBG}:{S_DBG+3}], 0 offen sc1
    s_waitcnt vmcnt(0)
    s_add_u32 s{sCN}, s{sCN}, 1
    s_cmp_lt_u32 s{sCN}, {opt.spin}
    s_cbranch_scc1 {Lsp}""")
    a.label(Lok)
    a(f"""v_readfirstlane_b32 s{sT0}, v{T+4}
    v_readfirstlane_b32 s{sT1}, v{T+5}
    s_or_b32 s{sT2}, s{sT0}, s{sT1}
    s_mov_b32 s{sFAST}, 0""")
    for sh in (0, 8, 16, 24):
        a(f"s_cmp_eq_u32 s{sT2}, {hex(32 << sh)}")
        a(f"s_cselect_b32 s{sFAST}, 1, s{sFAST}")
    a(f"s_min_u32 s{sT0}, s{sT0}, s{sT1}")
    a(f"s_cmp_eq_u32 s{sT0}, 0")
    a(f"s_cselect_b32 s{sFAST}, s{sFAST}, 0")
    if opt.safe: a(f"s_mov_b32 s{sFAST}, 0")
    fill_ones(a, L_ACTA)
    a("s_barrier")
    lq = LQ(a)
    gemv18(a, lq, H_C, 18, None, L_ACTA)
    gemv_opt(a, lq, L_ACTA, H_C8)
    select_tiles(a, VCSC, True)
    if opt.initmark:
        st.n = 1
        st.mark()
        st.dump(VW)
        a("s_branch L_exit")
    a("s_branch L_citer")
    a.label(Lodd)
    Lno = a.newlabel("Lno")
    a(f"s_cmp_eq_u32 s{sI}, 0")
    a(f"s_cbranch_scc0 {Lno}")
    a(f"v_cvt_pk_bf16_f32 v{VW}, v{VXR}, v{VXR+1}")
    a(f"v_cvt_pk_bf16_f32 v{VW+1}, v{VXR+2}, v{VXR+3}")
    a(f"v_lshrrev_b32 v{VW+2}, 1, v{VVEC}")
    a(f"s_lshr_b32 s{sT0}, s{sN}, 1")
    a(f"s_mul_i32 s{sT0}, s{sT0}, 1152")
    lanes_lt(a, 36)
    a(f"buffer_store_dwordx2 v[{VW}:{VW+1}], v{VW+2}, s[{S_OUT}:{S_OUT+3}], s{sT0} offen")
    lanes_all(a)
    a.label(Lno)
    a(f"s_add_u32 s{sIT}, s{sIT}, 1")
    a(f"s_cmp_lt_u32 s{sIT}, 6")
    a("s_cbranch_scc1 L_citer")
    st.dump(VW, [(0, 11, False), (1, 3, False), (15, 4, False), (3, 6, False), (17, 7, False), (4, 9, False), (12, 10, False), (13, 12, False)])
```

```python
import sys, argparse, math
from gen import *

A_REC = 640
WS_A = 0x0
WS_A_CH = 32 * 8 * A_REC
WS_Q = 0xA0000
WS_PB = 0xA8000
WS_PV_CH = 8 * 2304
WS_H = 0xBA000
WS_H_CH = 9216
WS_PD = 0xC3000
WS_FLAG = 0xD5000
WS_STAMP = 0x100000
WS_SIZE = 0x200000
SENT = -1
CSCALE = math.log2(math.e) / math.sqrt(128.0)
import struct
def f32(x): return struct.unpack("<I", struct.pack("<f", x))[0]

class Opt: pass

def srd(a, dst, lo, nbytes):
    a(f"""s_mov_b32 s{dst}, s{lo}
    s_and_b32 s{dst+1}, s{lo+1}, 0xffff
    s_mov_b32 s{dst+2}, {hex(nbytes)}
    s_mov_b32 s{dst+3}, 0x20000""")

P_X, P_K, P_V, P_WQ, P_WO, P_BX, P_W1, P_B1, P_W2, P_B2, P_OUT, P_DBG, P_WS = [56 + 2 * i for i in range(13)]
S_K, S_V, S_WS, S_DBG = 8, 12, 16, 20

class Stamp:
    def __init__(self, a, on, base=84, tmp=82, nmax=18): self.a, self.on, self.n, self.base, self.tmp, self.nmax = a, on, 0, base, tmp, nmax
    def mark(self, loop_reg=None, loop_n=1):
        if not self.on: return
        assert self.n + loop_n <= self.nmax, self.n
        self.a(f"s_memrealtime s[{self.tmp}:{self.tmp+1}]")
        self.a("s_waitcnt lgkmcnt(0)")
        if loop_reg is None:
            self.a(f"s_mov_b32 s{self.base+self.n}, s{self.tmp}")
        else:
            for k in range(loop_n):
                self.a(f"s_cmp_eq_u32 s{loop_reg}, {k}")
                self.a(f"s_cselect_b32 s{self.base+self.n+k}, s{self.tmp}, s{self.base+self.n+k}")
        self.n += loop_n
    def mark_if(self, reg, val):
        if not self.on: return
        assert self.n < self.nmax
        self.a(f"s_memrealtime s[{self.tmp}:{self.tmp+1}]")
        self.a("s_waitcnt lgkmcnt(0)")
        self.a(f"s_cmp_eq_u32 s{reg}, {val}")
        self.a(f"s_cselect_b32 s{self.base+self.n}, s{self.tmp}, s{self.base+self.n}")
        self.n += 1
    def dump(self, tmp, dbgmap=None):
        if not self.on: return
        a = self.a
        if self.on == 2 and dbgmap:
            a("s_mov_b64 exec, 1")
            for (slot, dw, inv) in dbgmap:
                if inv: a(f"s_not_b32 s{self.tmp}, s{self.base+slot}")
                else: a(f"s_mov_b32 s{self.tmp}, s{self.base+slot}")
                a(f"v_mov_b32 v{tmp+1}, s{self.tmp}")
                a(f"v_mov_b32 v{tmp}, {4*dw}")
                a(f"buffer_atomic_umax v{tmp+1}, v{tmp}, s[{S_DBG}:{S_DBG+3}], 0 offen sc1")
                a("s_waitcnt vmcnt(0)")
            a("s_mov_b64 exec, -1")
            self.n = 0
            return
        t = self.tmp
        a(f"""s_lshl_b32 s{t}, s2, 2
        s_add_u32 s{t}, s{t}, s3
        s_lshl_b32 s{t}, s{t}, 7
        s_add_u32 s{t}, s{t}, {WS_STAMP}
        v_mov_b32 v{tmp}, 0""")
        for k in range(self.nmax):
            a(f"v_mov_b32 v{tmp+1}, s{self.base+k}")
            a(f"buffer_store_dword v{tmp+1}, v{tmp}, s[{S_WS}:{S_WS+3}], s{t} offen offset:{4*k}")
        self.n = 0

def vm_wait(a, n):
    if n <= 62: a(f"s_waitcnt vmcnt({n})")

CAP = 60
def set_cap(c):
    global CAP
    CAP = c
NB_LDS = 5
NB = 19
G0 = [0, 1, 2, 11, 12, 13, 14, 15]
G1 = [3, 4, 5, 6, 7, 8, 9, 10]
G2 = [16, 17, 18]
UT = {}
def set_ny(ny):
    global G1, G2
    full = [3, 4, 5, 6, 7, 8, 9, 10]
    G1 = full[:ny]; G2 = full[ny:] + [16, 17, 18]
    UT.clear()
    for _u, _g in enumerate((G0, G1, G2)):
        for _t, _b in enumerate(_g): UT[_b] = (_u, _t)
set_ny(8)
sKB2 = 54
ILV = 0
def blk_off(beta):
    if not ILV: return beta * 4096
    return beta * 16384 if beta else 76 * 4096
def k_home(rb, e, j):
    r = (rb * 4 + e * 2 + j) * 4
    return f"a[{r}:{r+3}]"
def v_home(rb, i):
    s = rb * 4 + i
    if s < 8: r = 224 + 4 * s; return f"a[{r}:{r+3}]"
    r = 64 + 4 * (s - 8); return f"v[{r}:{r+3}]"

VKOFF, VVOFF, VLDS, SH01, SH23, VPA, VPB = 1, 2, 3, 4, 5, 6, 8
VL, VT = 10, 11
VACC = 12
VQ = 16
VPK = 32
VD = 44
VLT = 56
sKB, sLDSB, sP, sT19, sOFF, sREC, sQB, sHEAD, sSPLIT, sCNT, sQL = 24, 25, 26, 27, 28, 30, 31, 32, 33, 34, 35
sEX = 46
sC = 55
sWSP, sDBGP = 4, 6
sQW = 36
sMSK = 56
MISC = 144 * 1024
M_ST = MISC
M_O = MISC + 256
M_STASH = MISC + 4096
M_Q = MISC + 8192
VAHEAD = 3
def set_vahead(v):
    global VAHEAD
    VAHEAD = v

class LoadSeq:
    def __init__(self, a, opt, kb=None): self.a, self.opt, self.n, self.kb = a, opt, 0, (kb or sKB)
    nocap = False
    capv = None
    def cap(self):
        self.n += 1
        c = self.capv or CAP
        if self.n > c and not self.nocap: self.a(f"s_waitcnt vmcnt({c-1})")
    def k_loads(self, beta):
        a = self.a; fl = self.opt.kvflags
        a(f"s_add_u32 s{sOFF}, s{self.kb}, {blk_off(beta)}")
        for e in range(2):
            for j in range(2):
                self.cap()
                if beta < NB_LDS:
                    a(f"s_add_u32 m0, s{sLDSB}, {beta*8192 + (e*2+j)*1024}")
                    a(f"s_add_u32 s51, s{sOFF}, {e*512 + j*128}")
                    a(f"buffer_load_dwordx4 v{VKOFF}, s[{S_K}:{S_K+3}], s51 offen {fl} lds")
                else:
                    a(f"buffer_load_dwordx4 {k_home(beta-NB_LDS, e, j)}, v{VKOFF}, s[{S_K}:{S_K+3}], s{sOFF} offen offset:{e*512+j*128} {fl}")
    def v_loads(self, beta):
        a = self.a; fl = self.opt.kvflags if self.opt.vflags is None else self.opt.vflags
        a(f"s_add_u32 s{sOFF}, s{self.kb}, {blk_off(beta)}")
        if beta < NB_LDS:
            a(f"s_add_u32 m0, s{sLDSB}, {beta*8192 + 4096}")
        for i in range(4):
            self.cap()
            if beta < NB_LDS:
                a(f"buffer_load_dwordx4 v{VVOFF}, s[{S_V}:{S_V+3}], s{sOFF} offen offset:{i*1024} {fl} lds")
            else:
                a(f"buffer_load_dwordx4 {v_home(beta-NB_LDS, i)}, v{VVOFF}, s[{S_V}:{S_V+3}], s{sOFF} offen offset:{i*1024} {fl}")
    def opt_block(self, fn):
        a = self.a; L = a.newlabel("Lopt")
        a(f"s_cmp_eq_u32 s{sT19}, 0")
        a(f"s_cbranch_scc1 {L}")
        fn(0)
        a.label(L)

def q_select(a, qi_code):
    a(qi_code)
    a(f"""s_lshl_b32 s{sQL}, s52, 8
    s_add_u32 s{sQL}, s{sQL}, {M_Q}
    s_lshl_b32 s52, s52, 13
    s_lshl_b32 s{sQB}, s{sHEAD}, 8
    s_add_u32 s{sQB}, s{sQB}, s52
    s_add_u32 s{sQB}, s{sQB}, {WS_Q}""")

def q_fetch(a, opt):
    L, Lok = a.newlabel("Lqf"), a.newlabel("Lqo")
    T = VT
    a(f"""s_lshl_b32 s52, s3, 6
    s_add_u32 s52, s52, s{sQB}
    s_add_u32 s52, s{sWSP}, s52
    s_addc_u32 s53, s{sWSP+1}, 0
    s_mov_b32 s{sCNT}, 0""")
    a.label(L)
    a(f"""s_load_dwordx16 s[{sQW}:{sQW+15}], s[52:53], 0x0 glc
    s_add_u32 s{sCNT}, s{sCNT}, 1
    s_waitcnt lgkmcnt(0)
    s_cmp_ge_u32 s{sCNT}, {opt.spin}
    s_cbranch_scc1 {Lok}_t
    s_cmp_eq_u32 s{sQW}, -1
    s_cbranch_scc1 {L}_s
    s_cmp_eq_u32 s{sQW+15}, -1
    s_cbranch_scc0 {Lok}_t""")
    a.label(f"{L}_s")
    a(f"s_sleep {opt.qsleep}")
    a(f"s_branch {L}")
    a.label(f"{Lok}_t")
    for k in range(16): a(f"v_writelane_b32 v{T}, s{sQW+k}, {k}")
    a(f"s_cmp_ge_u32 s{sCNT}, {opt.spin}")
    a(f"s_cbranch_scc1 {Lok}")
    a("s_mov_b32 exec_lo, 0xffff")
    a("s_mov_b32 exec_hi, 0")
    a(f"v_cmp_eq_u32 vcc, -1, v{T}")
    a("s_mov_b64 exec, -1")
    a(f"s_cbranch_vccnz {L}")
    a.label(Lok)
    a(f"""s_lshl_b32 s52, s3, 6
    s_add_u32 s52, s52, s{sQL}
    v_lshl_add_u32 v{VL}, v0, 2, s52
    s_mov_b32 exec_lo, 0xffff
    s_mov_b32 exec_hi, 0
    ds_write_b32 v{VL}, v{T}
    s_mov_b64 exec, -1
    s_waitcnt lgkmcnt(0)
    s_barrier""")

def q_to_regs(a):
    T = VLT
    a(f"""v_bfe_u32 v{T}, v0, 3, 1
    v_lshlrev_b32 v{T}, 6, v{T}                ; (n>>3)*64
    v_lshrrev_b32 v{T+1}, 4, v0
    v_lshl_add_u32 v{T}, v{T+1}, 4, v{T}       ; + g*16
    v_add_u32 v{T}, s{sQL}, v{T}
    v_xor_b32 v{T+1}, 64, v{T}""")
    for e in range(2):
        for j in range(2):
            r = VQ + e * 8 + j * 4
            a(f"ds_read_b128 v[{r}:{r+3}], v{T+e} offset:{j*128}")
    a("s_waitcnt lgkmcnt(0)")

def s_poll(a, opt, basepair, off, ok_code, ndw=1, sleep=0):
    L, Lok = a.newlabel("Lsp"), a.newlabel("Lso")
    a(f"s_mov_b32 s{sCNT}, 0")
    a.label(L)
    dst = f"s{sQW}" if ndw == 1 else f"s[{sQW}:{sQW+ndw-1}]"
    sfx = "" if ndw == 1 else f"x{ndw}"
    a(f"s_load_dword{sfx} {dst}, s[{basepair}:{basepair+1}], {hex(off)} glc")
    a("s_waitcnt lgkmcnt(0)")
    a(ok_code)
    a(f"s_cbranch_scc1 {Lok}")
    if sleep: a(f"s_sleep {sleep}")
    a(f"""s_add_u32 s{sCNT}, s{sCNT}, 1
    s_cmp_lt_u32 s{sCNT}, {opt.spin}
    s_cbranch_scc1 {L}""")
    a.label(Lok)

def wave_reduce(a, reg, op, tmp_s):
    for sh in (8, 4, 2, 1):
        a(f"{op}_dpp v{reg}, v{reg}, v{reg} row_ror:{sh} row_mask:0xf bank_mask:0xf")
    for k in range(4): a(f"v_readlane_b32 s{tmp_s+k}, v{reg}, {16*k}")
    a(f"v_mov_b32 v{reg}, s{tmp_s}")
    for k in range(1, 4): a(f"{op} v{reg}, s{tmp_s+k}, v{reg}")

def attention(a, opt, st):
    a(f"""
    s_lshr_b32 s{sHEAD}, s2, 3
    s_and_b32 s{sSPLIT}, s2, 7
    s_cmp_gt_u32 s{sSPLIT}, {opt.cx}
    s_subb_u32 s{sSPLIT}, s{sSPLIT}, 0
    s_lshl_b32 s50, s{sSPLIT}, 2
    s_add_u32 s50, s50, s3                 ; omega
    s_cmp_eq_u32 s3, 0
    s_cselect_b32 s{sT19}, 1, 0
    s_cmp_eq_u32 s50, 1
    s_cselect_b32 s{sT19}, 1, s{sT19}
    s_mul_i32 s51, s50, 18
    s_add_u32 s52, s50, 3
    s_lshr_b32 s52, s52, 2
    s_add_u32 s51, s51, s52
    s_cmp_ge_u32 s50, 2
    s_addc_u32 s51, s51, 0
    s_add_u32 s51, s51, s{sT19}
    s_sub_u32 s51, s51, 1
    s_lshl_b32 s51, s51, 12
    s_lshl_b32 s{sKB}, s{sHEAD}, 21
    s_add_u32 s{sKB}, s{sKB}, s51
    """)
    if opt.ilv:
        a(f"""s_mul_i32 s51, s{sSPLIT}, 73
        s_cmp_ge_u32 s{sSPLIT}, 1
        s_addc_u32 s51, s51, 0
        s_add_u32 s51, s51, s3
        s_sub_u32 s51, s51, 4
        s_lshl_b32 s51, s51, 12
        s_lshl_b32 s{sKB}, s{sHEAD}, 21
        s_add_u32 s{sKB}, s{sKB}, s51""")
    a(f"""
    s_mul_i32 s{sLDSB}, s3, {40*1024}
    s_cmp_ge_u32 s3, 2
    s_cselect_b32 s52, {8*1024}, 0
    s_sub_u32 s{sLDSB}, s{sLDSB}, s52
    s_cmp_eq_u32 s3, 3
    s_cselect_b32 s52, {8*1024}, 0
    s_sub_u32 s{sLDSB}, s{sLDSB}, s52
    """)
    a(f"""
    v_and_b32 v{VT}, 15, v0                ; m / n / c
    v_lshrrev_b32 v{VL}, 4, v0             ; g
    v_and_b32 v{VKOFF}, 3, v{VT}
    v_lshlrev_b32 v{VKOFF}, 2, v{VKOFF}
    v_bfe_u32 v{VVOFF}, v{VT}, 2, 1
    v_add_u32 v{VKOFF}, v{VKOFF}, v{VVOFF} ; key
    v_lshlrev_b32 v{VKOFF}, 8, v{VKOFF}
    v_lshrrev_b32 v{VVOFF}, 3, v{VT}
    v_lshlrev_b32 v{VVOFF}, 6, v{VVOFF}
    v_lshl_add_u32 v{VVOFF}, v{VL}, 4, v{VVOFF}
    v_add_u32 v{VKOFF}, v{VKOFF}, v{VVOFF}
    v_lshlrev_b32 v{VVOFF}, 4, v0
    v_add_u32 v{VLDS}, s{sLDSB}, v{VVOFF}
    """)
    a("s_waitcnt lgkmcnt(0)")
    srd(a, S_K, P_K, 0x8000000)
    st.mark()
    if opt.cpf: code_prefetch(a, "L_attn_rest", "L_chain", 2, VT, VLT, 1)
    if opt.wpf:
        a(f"""s_mul_i32 s50, s{sHEAD}, 7
        s_add_u32 s50, s50, s{sSPLIT}
        s_lshl_b32 s50, s50, 2
        s_add_u32 s50, s50, s3""")
        mats = [(P_WO, 36864), (P_W1, 41472), (P_W2, 41472)] + ([(P_WQ, 36864)] if opt.wpf > 1 else [])
        for k, (ptr, nlines) in enumerate(mats):
            per = (nlines + 895) // 896
            a(f"""s_mul_i32 s51, s50, {per}
            v_min_u32 v{VT}, {per-1}, v0
            v_add_u32 v{VT}, s51, v{VT}
            v_min_u32 v{VT}, {nlines-1}, v{VT}
            v_lshlrev_b32 v{VT}, 7, v{VT}
            global_load_dword v{VLT+2+k}, v{VT}, s[{ptr}:{ptr+1}] {opt.wpfflags}""")
    a(f"v_and_b32 v{VT}, 15, v0")
    ls = LoadSeq(a, opt); ls.capv = opt.cap1
    ls.opt_block(ls.k_loads)
    for b in range(1, 4): ls.k_loads(b)
    a.label("L_attn_rest")
    srd(a, S_V, P_V, 0x8000000)
    if opt.tlb:
        a(f"v_mov_b32 v{VLT+5}, 8192")
        a(f"s_add_u32 s50, s{sKB}, 0x4000000")
        a(f"buffer_load_dword v{VLT+2}, v{VLT+5}, s[{S_V}:{S_V+3}], s{sKB} offen nt")
        a(f"buffer_load_dword v{VLT+3}, v{VLT+5}, s[{S_K}:{S_K+3}], s50 offen nt")
        a(f"buffer_load_dword v{VLT+4}, v{VLT+5}, s[{S_V}:{S_V+3}], s50 offen nt")
    srd(a, S_WS, P_WS, WS_SIZE)
    srd(a, S_DBG, P_DBG, 256)
    a(f"s_mov_b64 s[{sWSP}:{sWSP+1}], s[{P_WS}:{P_WS+1}]")
    a(f"s_mov_b64 s[{sDBGP}:{sDBGP+1}], s[{P_DBG}:{P_DBG+1}]")
    a(f"""v_lshlrev_b32 v{VL}, 4, v{VT}
    v_mov_b32 v{SH01}, 63
    v_cmp_gt_u32 vcc, 4, v{VT}
    v_cndmask_b32 v{SH01}, v{SH01}, v{VL}, vcc
    v_subrev_u32 v{VL}, 64, v{VL}
    v_mov_b32 v{SH23}, 63
    v_cmp_gt_u32 vcc, 64, v{VL}
    v_cndmask_b32 v{SH23}, v{SH23}, v{VL}, vcc
    v_mov_b32 v7, 0
    v_mov_b32 v9, 0
    s_mov_b32 s{sC}, {hex(f32(CSCALE))}""")
    for tau in range(8):
        lo, hi = (0x00010001 << tau), (0x01000100 << tau)
        a(f"""s_mov_b32 s{sMSK+4*tau}, {hex(lo)}
        s_mov_b32 s{sMSK+4*tau+1}, {hex(hi)}
        s_mov_b32 s{sMSK+4*tau+2}, {hex(hi)}
        s_mov_b32 s{sMSK+4*tau+3}, {hex(lo)}""")
    a(f"""
    s_lshl_b32 s{sREC}, s{sHEAD}, 3
    s_add_u32 s{sREC}, s{sREC}, s{sSPLIT}
    s_mul_i32 s{sREC}, s{sREC}, {A_REC}
    """)
    Lc = a.newlabel("Lclr")
    a(f"s_cmp_eq_u32 s3, 3")
    a(f"s_cbranch_scc0 {Lc}")
    a(f"""v_mov_b32 v{VACC}, -1
    v_mov_b32 v{VACC+1}, -1
    v_mov_b32 v{VACC+2}, -1
    v_mov_b32 v{VACC+3}, -1
    s_mov_b32 exec_hi, 1""")
    for n in range(4):
        a(f"s_add_u32 s{sOFF}, s{sREC}, {WS_A + n*WS_A_CH}")
        a(f"buffer_store_dwordx4 v[{VACC}:{VACC+3}], v{VVOFF}, s[{S_WS}:{S_WS+3}], s{sOFF} offen sc0 sc1")
    a(f"""s_mov_b64 exec, -1
    s_waitcnt vmcnt(0)
    v_mov_b32 v{VACC}, 1
    v_mov_b32 v{VACC+1}, 0
    s_mov_b64 exec, 1
    buffer_atomic_add v{VACC}, v{VACC+1}, s[{S_DBG}:{S_DBG+3}], 0 offen sc1
    s_mov_b64 exec, -1""")
    a.label(Lc)
    for b in range(4, NB):
        ls.k_loads(b)
        if b == 14:
            a(f"v_mov_b32 v{VACC}, 128")
            a(f"buffer_load_dwordx2 v[{VL}:{VT}], v{VACC}, s[{S_DBG}:{S_DBG+3}], 0 offen sc1")
            ls.n += 1
    a(f"s_waitcnt vmcnt({min(16, opt.cap1)})")
    Lok, Lsp = a.newlabel("Lcok"), a.newlabel("Lcsp")
    a(f"s_mov_b32 s{sCNT}, 0")
    a.label(Lsp)
    a(f"v_sad_u8 v{VL}, v{VL}, 0, 0")
    a(f"v_sad_u8 v{VL}, v{VT}, 0, v{VL}")
    a(f"v_readfirstlane_b32 s52, v{VL}")
    a(f"s_cmp_ge_u32 s52, {opt.nchain}")
    a(f"s_cbranch_scc1 {Lok}")
    a(f"""buffer_load_dwordx2 v[{VL}:{VT}], v{VACC}, s[{S_DBG}:{S_DBG+3}], 0 offen sc1
    s_waitcnt vmcnt(0)
    s_add_u32 s{sCNT}, s{sCNT}, 1
    s_cmp_lt_u32 s{sCNT}, {opt.spin}
    s_cbranch_scc1 {Lsp}""")
    a.label(Lok)
    ls.nocap = True
    ls.opt_block(ls.v_loads)
    for b in range(1, VAHEAD + 1): ls.v_loads(b)
    q_select(a, "s_mov_b32 s52, 0")
    q_fetch(a, opt)
    q_to_regs(a)
    a(f"s_waitcnt vmcnt({4*VAHEAD})")
    a(f"s_mov_b32 s{sP}, 0")
    st.mark()
    a.label("L_pass")
    st.mark(sP, 4)
    for k in range(12): a(f"v_mov_b32 v{VPK+k}, 0xff800000")
    if opt.v2:
        Lst = a.newlabel("Lstash")
        a(f"s_cmp_eq_u32 s{sP}, 2")
        a(f"s_cbranch_scc0 {Lst}")
        a(f"s_lshl_b32 s52, s3, 10")
        a(f"s_add_u32 s52, s52, {M_STASH}")
        a(f"v_add_u32 v{VT}, s52, v{VVOFF}")
        a(f"ds_read_b128 v[{VPK+4}:{VPK+7}], v{VT}")
        a("s_waitcnt lgkmcnt(0)")
        a.label(Lst)
    pend = []
    state = {"d": 0}
    def cnd_ops(d, b, e):
        u, tau = UT[b]
        mk = sMSK + 4 * tau + 2 * e
        return [f"v_cndmask_b32 v{VPK+4*u+i}, v{VPK+4*u+i}, v{VD+4*d+i}, s[{mk}:{mk+1}]" for i in range(4)]
    def tile(b, e, A0, A1):
        d = state["d"]; state["d"] = (d + 1) % 3
        D = f"v[{VD+4*d}:{VD+4*d+3}]"
        q0 = VQ + e * 8
        c = cnd_ops(*pend.pop(0)) if len(pend) == 2 else []
        a(f"v_mfma_f32_16x16x32_bf16 {D}, {A0}, v[{q0}:{q0+3}], 0")
        for o in c[:2]: a(o)
        a(f"v_mfma_f32_16x16x32_bf16 {D}, {A1}, v[{q0+4}:{q0+7}], {D}")
        for o in c[2:]: a(o)
        pend.append((d, b, e))
    def flush():
        while pend:
            for o in cnd_ops(*pend.pop(0)): a(o)
    def lds_read_tile(b, e):
        a(f"ds_read_b128 v[{VLT}:{VLT+3}], v{VLDS} offset:{b*8192 + (e*2)*1024}")
        a(f"ds_read_b128 v[{VLT+4}:{VLT+7}], v{VLDS} offset:{b*8192 + (e*2+1)*1024}")
    LT0, LT1 = f"v[{VLT}:{VLT+3}]", f"v[{VLT+4}:{VLT+7}]"
    Lo = a.newlabel("Lqk0")
    a(f"s_cmp_eq_u32 s{sT19}, 0")
    a(f"s_cbranch_scc1 {Lo}")
    lds_read_tile(0, 0)
    a(f"ds_read_b128 v[{VD+4}:{VD+7}], v{VLDS} offset:2048")
    a(f"ds_read_b128 v[{VD+8}:{VD+11}], v{VLDS} offset:3072")
    a("s_waitcnt lgkmcnt(2)")
    a(f"v_mfma_f32_16x16x32_bf16 v[{VD}:{VD+3}], {LT0}, v[{VQ}:{VQ+3}], 0")
    a("s_waitcnt lgkmcnt(0)")
    a(f"v_mfma_f32_16x16x32_bf16 v[{VACC}:{VACC+3}], v[{VD+4}:{VD+7}], v[{VQ+8}:{VQ+11}], 0")
    a(f"v_mfma_f32_16x16x32_bf16 v[{VD}:{VD+3}], {LT1}, v[{VQ+4}:{VQ+7}], v[{VD}:{VD+3}]")
    a(f"v_mfma_f32_16x16x32_bf16 v[{VACC}:{VACC+3}], v[{VD+8}:{VD+11}], v[{VQ+12}:{VQ+15}], v[{VACC}:{VACC+3}]")
    u0, t0_ = UT[0]
    for i in range(4): a(f"v_cndmask_b32 v{VPK+4*u0+i}, v{VPK+4*u0+i}, v{VD+i}, s[{sMSK+4*t0_}:{sMSK+4*t0_+1}]")
    for i in range(4): a(f"v_cndmask_b32 v{VPK+4*u0+i}, v{VPK+4*u0+i}, v{VACC+i}, s[{sMSK+4*t0_+2}:{sMSK+4*t0_+3}]")
    a.label(Lo)
    state["d"] = 0
    lsq = LoadSeq(a, opt, kb=sKB2); lsq.nocap = True
    reloaded = []
    def freed(b, e):
        if e != 1 or not opt.qkreload or b in G1 or len(reloaded) >= opt.qkreload: return
        L = a.newlabel("Lqr")
        a(f"s_cmp_eq_u32 s{sP}, 1")
        a(f"s_cbranch_scc0 {L} ;light")
        a.ws0 = True
        lsq.k_loads(b)
        a.ws0 = False
        a.label(L)
        reloaded.append(b)
    def qk_part(lds_blocks, reg_blocks):
        lt_ = [(b, e) for b in lds_blocks for e in range(2)]
        rt_ = [(b, e) for b in reg_blocks for e in range(2)]
        per = len(rt_) // len(lt_)
        ri = 0
        for (b, e) in lt_:
            lds_read_tile(b, e)
            for _ in range(per):
                (rb, re_) = rt_[ri]; ri += 1
                tile(rb, re_, k_home(rb-NB_LDS, re_, 0), k_home(rb-NB_LDS, re_, 1))
                freed(rb, re_)
            a("s_waitcnt lgkmcnt(0)")
            tile(b, e, LT0, LT1)
            freed(b, e)
        while ri < len(rt_):
            (rb, re_) = rt_[ri]; ri += 1
            tile(rb, re_, k_home(rb-NB_LDS, re_, 0), k_home(rb-NB_LDS, re_, 1))
            freed(rb, re_)
    if opt.v2:
        qk_part([1, 2], [b for b in range(5, NB) if b not in G1])
        Lsk = a.newlabel("Lqkb")
        flush()
        a(f"s_cmp_eq_u32 s{sP}, 2")
        a(f"s_cbranch_scc1 {Lsk}")
        Lnw = a.newlabel("Lnw")
        a(f"s_cmp_eq_u32 s{sP}, 3")
        a(f"s_cbranch_scc0 {Lnw}")
        a("s_waitcnt vmcnt(0)")
        a.label(Lnw)
        state["d"] = 0
        qk_part([3, 4], [b for b in G1 if b >= NB_LDS])
        flush()
        a.label(Lsk)
    else:
        qk_part([1, 2, 3, 4], list(range(5, NB)))
        flush()
    st.mark_if(sP, 3)
    Lr0, Lr1 = a.newlabel("Lrl0"), a.newlabel("Lrl1")
    a(f"s_cmp_eq_u32 s{sP}, 1")
    a(f"s_cbranch_scc0 {Lr1}")
    a(f"s_add_u32 s{sKB}, s{sKB}, 0x4000000")
    ls2 = LoadSeq(a, opt); ls2.nocap = True
    ls2.opt_block(ls2.k_loads)
    klist = [b for b in range(1, NB) if not (opt.v2 and b in G1) and b not in reloaded]
    K_EARLY = opt.kearly
    for b in klist[:K_EARLY]: ls2.k_loads(b)
    a.label(Lr1)
    for k in range(12):
        a(f"v_mov_b32_dpp v{VD+k}, v{VPK+k} row_ror:8 row_mask:0xf bank_mask:0xf")
    for k in range(12):
        a(f"v_permlane32_swap_b32 v{VPK+k}, v{VD+k}")
    for k in range(12):
        a(f"v_add_f32_dpp v{VPK+k}, v{VD+k}, v{VPK+k} row_ror:8 row_mask:0xf bank_mask:0xf")
    a(f"v_max3_f32 v{VT}, v{VPK}, v{VPK+1}, v{VPK+2}")
    for k in range(3, 11, 2): a(f"v_max3_f32 v{VT}, v{VT}, v{VPK+k}, v{VPK+k+1}")
    a(f"v_max_f32 v{VT}, v{VT}, v{VPK+11}")
    wave_reduce(a, VT, "v_max_f32", 50)
    st.mark_if(sP, 3)
    a(f"v_mul_f32 v{VT}, s{sC}, v{VT}")
    for k in range(12): a(f"v_fma_f32 v{VPK+k}, v{VPK+k}, s{sC}, -v{VT}")
    for k in range(12): a(f"v_exp_f32 v{VPK+k}, v{VPK+k}")
    a(f"v_add_f32 v{VL}, v{VPK}, v{VPK+1}")
    for k in range(2, 12): a(f"v_add_f32 v{VL}, v{VL}, v{VPK+k}")
    for k in range(12): a(f"v_cvt_pk_bf16_f32 v{VPK+k}, v{VPK+k}, 0")
    for k in range(4): a(f"v_mov_b32 v{VACC+k}, 0")
    wave_reduce(a, VL, "v_add_f32", 50)
    a(f"""v_mov_b32 v{VLT}, v{VT}
    v_mul_f32 v{VLT+1}, 0.5, v{VL}
    s_lshl_b32 s52, s3, 3
    s_add_u32 s52, s52, {M_ST}
    v_mov_b32 v{VLT+2}, s52
    ds_write_b64 v{VLT+2}, v[{VLT}:{VLT+1}]""")
    st.mark_if(sP, 3)
    ACC = f"v[{VACC}:{VACC+3}]"
    stt = {"a": 0, "prev": None, "pp": None}
    def bc(b, i):
        s_ = stt["a"]; stt["a"] ^= 1
        u, tau = UT[b]
        P = VPA if s_ == 0 else VPB
        a(f"v_mov_b32_dpp v{P}, v{VPK+4*u+i} row_newbcast:{tau} row_mask:0xf bank_mask:0xf")
        return (P, s_)
    def sh(P, s_):
        A = VD + 4 * s_
        a(f"v_lshlrev_b64 v[{A}:{A+1}], v{SH01}, v[{P}:{P+1}]")
        a(f"v_lshlrev_b64 v[{A+2}:{A+3}], v{SH23}, v[{P}:{P+1}]")
        return f"v[{A}:{A+3}]"
    pipe = []
    def slot(b, i, B, pre=None):
        pipe.append({"P": bc(b, i), "B": B, "pre": pre, "A": None})
        if len(pipe) >= 2: pipe[-2]["A"] = sh(*pipe[-2]["P"])
        if len(pipe) == 3:
            p = pipe.pop(0)
            if p["pre"]: p["pre"]()
            a(f"v_mfma_f32_16x16x32_bf16 {ACC}, {p['A']}, {p['B']}, {ACC}")
    def pv_flush():
        while pipe:
            if pipe[-1]["A"] is None: pipe[-1]["A"] = sh(*pipe[-1]["P"])
            p = pipe.pop(0)
            if p["pre"]: p["pre"]()
            a(f"v_mfma_f32_16x16x32_bf16 {ACC}, {p['A']}, {p['B']}, {ACC}")
    Lres, Lpvd = a.newlabel("Lpvres"), a.newlabel("Lpvd")
    a(f"s_bitcmp1_b32 s{sP}, 0")
    a(f"s_cbranch_scc1 {Lres}")
    lv = LoadSeq(a, opt); lv.nocap = True
    lt3 = [VLT, VLT + 4, VD + 8]
    def arrival_block(b, last):
        if b + VAHEAD < NB and b >= 1: lv.v_loads(b + VAHEAD)
        after = min(NB - 1, b + VAHEAD) - b if b >= 1 else VAHEAD
        a(f"s_waitcnt vmcnt({4*after})")
        if b < NB_LDS:
            for i in range(4):
                t = lt3[i % 3] if i < 3 else lt3[0]
                if i < 3: a(f"ds_read_b128 v[{t}:{t+3}], v{VLDS} offset:{b*8192 + 4096 + i*1024}")
            for i in range(4):
                t = lt3[i % 3]
                if i == 3:
                    pv_flush()
                    a(f"ds_read_b128 v[{t}:{t+3}], v{VLDS} offset:{b*8192 + 4096 + 3*1024}")
                slot(b, i, f"v[{t}:{t+3}]", pre=(lambda: a("s_waitcnt lgkmcnt(0)")))
            pv_flush()
        else:
            for i in range(4): slot(b, i, v_home(b - NB_LDS, i))
    Lo = a.newlabel("Lpa0")
    a(f"s_cmp_eq_u32 s{sT19}, 0")
    a(f"s_cbranch_scc1 {Lo}")
    arrival_block(0, False)
    a.label(Lo)
    stt["a"] = 0
    for b in range(1, NB): arrival_block(b, b == NB - 1)
    pv_flush()
    a(f"s_branch {Lpvd}")
    a.label(Lres)
    stt["a"] = 0
    ltr = [VLT, VLT + 4, VD + 8, VQ, VQ + 4, VQ + 8, VQ + 12]
    NT = len(ltr)
    Lo = a.newlabel("Lpv0")
    a(f"s_cmp_eq_u32 s{sT19}, 0")
    a(f"s_cbranch_scc1 {Lo}")
    for i in range(4): a(f"ds_read_b128 v[{ltr[3+i]}:{ltr[3+i]+3}], v{VLDS} offset:{4096 + i*1024}")
    for i in range(4): slot(0, i, f"v[{ltr[3+i]}:{ltr[3+i]+3}]", pre=(lambda n=3-i: a(f"s_waitcnt lgkmcnt({n})")))
    pv_flush()
    a.label(Lo)
    stt["a"] = 0
    lds_items = [(b, i) for b in range(1, NB_LDS) for i in range(4)]
    reg_items = [(b, i) for b in range(NB_LDS, NB) for i in range(4)]
    lq = []; li = [0]
    def lds_issue():
        if li[0] < len(lds_items):
            b, i = lds_items[li[0]]; t = ltr[li[0] % NT]; li[0] += 1
            a(f"ds_read_b128 v[{t}:{t+3}], v{VLDS} offset:{b*8192 + 4096 + i*1024}")
            lq.append((b, i, t))
    for _ in range(NT): lds_issue()
    cnt = 0; since = []
    for (b, i) in reg_items:
        slot(b, i, v_home(b - NB_LDS, i))
        cnt += 1
        since = [x + 1 for x in since]
        if since and since[0] >= 2:
            since.pop(0); lds_issue()
        if cnt % 3 == 0 and lq:
            lb, lidx, t = lq.pop(0)
            na = len(lq)
            slot(lb, lidx, f"v[{t}:{t+3}]", pre=(lambda n=na: a(f"s_waitcnt lgkmcnt({n})")))
            since = [x + 1 for x in since]
            since.append(0)
    assert not lq and li[0] == len(lds_items), (lq, li)
    pv_flush()
    a.label(Lpvd)
    st.mark_if(sP, 3)
    a(f"""v_and_b32 v{VD+3}, 15, v0
    v_lshlrev_b32 v{VD+3}, 5, v{VD+3}
    v_lshrrev_b32 v{VD+4}, 4, v0
    v_lshl_add_u32 v{VD+3}, v{VD+4}, 4, v{VD+3}
    s_lshl_b32 s52, s3, 9
    s_add_u32 s52, s52, {M_O}
    v_add_u32 v{VD+3}, s52, v{VD+3}
    s_mov_b32 exec_hi, 0
    ds_write_b128 v{VD+3}, v[{VACC}:{VACC+3}]
    s_mov_b64 exec, -1
    s_waitcnt lgkmcnt(0)
    s_barrier""")
    Lp = a.newlabel("Lpub")
    a(f"s_cmp_eq_u32 s3, 0")
    a(f"s_cbranch_scc0 {Lp}")
    a(f"v_add_u32 v{VD}, {M_O}, v{VVOFF}")
    a(f"v_mov_b32 v{VD+1}, {M_ST}")
    a(f"ds_read_b128 v[{VPK}:{VPK+3}], v{VD+1}")
    a(f"ds_read_b128 v[{VPK+4}:{VPK+7}], v{VD+1} offset:16")
    O = [VD + 4, VD + 8, VLT, VLT + 4]
    for w in range(4): a(f"ds_read_b128 v[{O[w]}:{O[w]+3}], v{VD} offset:{w*512}")
    a(f"""s_mul_i32 s52, s{sP}, {WS_A_CH}
    s_add_u32 s52, s52, s{sREC}
    s_waitcnt lgkmcnt(4)
    v_max_f32 v{VT}, v{VPK}, v{VPK+2}
    v_max3_f32 v{VT}, v{VT}, v{VPK+4}, v{VPK+6}""")
    for w in range(4): a(f"v_sub_f32 v{VPK+2*w}, v{VPK+2*w}, v{VT}")
    for w in range(4): a(f"v_exp_f32 v{VPK+2*w}, v{VPK+2*w}")
    a(f"v_mul_f32 v{VL}, v{VPK}, v{VPK+1}")
    for w in range(1, 4): a(f"v_fmac_f32 v{VL}, v{VPK+2*w}, v{VPK+2*w+1}")
    a("s_waitcnt lgkmcnt(0)")
    for c in range(4): a(f"v_mul_f32 v{O[0]+c}, v{O[0]+c}, v{VPK}")
    for w in range(1, 4):
        for c in range(4): a(f"v_fmac_f32 v{O[0]+c}, v{O[w]+c}, v{VPK+2*w}")
    a(f"""v_cmp_eq_u32 vcc, 32, v0
    v_cndmask_b32 v{O[0]}, v{O[0]}, v{VT}, vcc
    v_cndmask_b32 v{O[0]+1}, v{O[0]+1}, v{VL}, vcc
    s_mov_b32 exec_hi, 1
    buffer_store_dwordx4 v[{O[0]}:{O[0]+3}], v{VVOFF}, s[{S_WS}:{S_WS+3}], s52 offen sc0 sc1
    s_mov_b64 exec, -1""")
    a.label(Lp)
    a("s_barrier")
    st.mark(sP, 4)
    Lnr, Lend = a.newlabel("Lnr"), a.newlabel("Laend")
    a(f"s_cmp_eq_u32 s{sP}, 3")
    a(f"s_cbranch_scc1 {Lend}")
    a(f"s_cmp_eq_u32 s{sP}, 1")
    a(f"s_cbranch_scc0 {Lnr}")
    ls2.nocap = False; ls2.n = 1000
    for b in klist[K_EARLY:]: ls2.k_loads(b)
    ls2.nocap = True
    ls2.opt_block(ls2.v_loads)
    for b in range(1, VAHEAD + 1): ls2.v_loads(b)
    q_select(a, "s_mov_b32 s52, 1")
    q_to_regs(a)
    a(f"s_waitcnt vmcnt({4*VAHEAD})")
    a(f"s_mov_b32 s{sP}, 2")
    a("s_branch L_pass")
    a.label(Lnr)
    Lp2, Lqp = a.newlabel("Lp2"), a.newlabel("Lqp")
    a(f"s_cmp_eq_u32 s{sP}, 0")
    a(f"s_cbranch_scc0 {Lp2}")
    a(f"s_add_u32 s{sKB2}, s{sKB}, 0x4000000")
    q_select(a, "s_mov_b32 s52, 1")
    q_fetch(a, opt)
    q_to_regs(a)
    def gate(word):
        Lg, Lgo = a.newlabel("Lgate"), a.newlabel("Lgateok")
        a(f"s_mov_b32 s{sCNT}, 0")
        a(f"v_mov_b32 v{VT}, {WS_FLAG + 4*word}")
        a.label(Lg)
        a(f"""buffer_load_dword v{VL}, v{VT}, s[{S_WS}:{S_WS+3}], 0 offen sc1
        s_waitcnt vmcnt(0)
        v_readfirstlane_b32 s52, v{VL}
        s_cmp_lg_u32 s52, -1
        s_cbranch_scc1 {Lgo}
        s_sleep {opt.gsl}
        s_add_u32 s{sCNT}, s{sCNT}, 1
        s_cmp_lt_u32 s{sCNT}, {opt.spin}
        s_cbranch_scc1 {Lg}""")
        a.label(Lgo)
    if (opt.gate & 1) and not opt.pre2: gate(0)
    TS = [(56, 60), (32, 40), (12, 52)]
    tl2 = [(b, e) for b in G1 for e in range(2)]
    outq = []
    def ld(t):
        b, e = tl2[t]
        a(f"s_add_u32 s{sOFF}, s{sKB2}, {blk_off(b)}")
        for j in range(2):
            r = TS[t % 3][j]
            a(f"buffer_load_dwordx4 v[{r}:{r+3}], v{VKOFF}, s[{S_K}:{S_K+3}], s{sOFF} offen offset:{e*512+j*128} {opt.kvflags if opt.p2flags is None else opt.p2flags}")
            outq.append(t)
    def wt(tag):
        i = len(outq) - 1 - outq[::-1].index(tag)
        a(f"s_waitcnt vmcnt({len(outq) - 1 - i})")
        del outq[:i + 1]
    for t in range(3): ld(t)
    if (opt.gate & 1) and opt.pre2: gate(0)
    for k in range(4): a(f"v_mov_b32 v{VPK+4+k}, 0xff800000")
    prev = None
    def fin2(dd, b, e):
        u, tau = UT[b]
        mk = sMSK + 4 * tau + 2 * e
        for i in range(4):
            a(f"v_cndmask_b32 v{VPK+4+i}, v{VPK+4+i}, v{VD+4*dd+i}, s[{mk}:{mk+1}]")
    for t, (b, e) in enumerate(tl2):
        wt(t)
        dd = t % 2
        D = f"v[{VD+4*dd}:{VD+4*dd+3}]"
        q0 = VQ + e * 8
        r0, r1 = TS[t % 3]
        a(f"v_mfma_f32_16x16x32_bf16 {D}, v[{r0}:{r0+3}], v[{q0}:{q0+3}], 0")
        a(f"v_mfma_f32_16x16x32_bf16 {D}, v[{r1}:{r1+3}], v[{q0+4}:{q0+7}], {D}")
        if t + 3 < len(tl2): ld(t + 3)
        if prev: fin2(*prev)
        prev = (dd, b, e)
    fin2(*prev)
    a(f"s_lshl_b32 s52, s3, 10")
    a(f"s_add_u32 s52, s52, {M_STASH}")
    a(f"v_add_u32 v{VT}, s52, v{VVOFF}")
    a(f"ds_write_b128 v{VT}, v[{VPK+4}:{VPK+7}]")
    a("s_waitcnt lgkmcnt(0)")
    a(f"s_branch {Lqp}")
    a.label(Lp2)
    if opt.gate & 2: gate(1)
    import copy
    opt3 = copy.copy(opt)
    if opt.rflags is not None: opt3.kvflags = opt.rflags
    ls3 = LoadSeq(a, opt3)
    ls3.nocap = True
    for b in G1: ls3.k_loads(b)
    a.label(Lqp)
    q_select(a, f"""s_lshr_b32 s52, s{sP}, 1
    s_add_u32 s52, s52, 2""")
    q_fetch(a, opt)
    q_to_regs(a)
    a(f"s_add_u32 s{sP}, s{sP}, 1")
    a("s_branch L_pass")
    a.label(Lend)
    st.dump(VD, [(0, 1, True), (10, 2, False), (12, 5, False), (13, 8, False), (3, 13, False), (1, 14, False)])


def code_prefetch(a, start, end, nloads, vtmp, vdst, wave, sb=50, dk="v"):
    L, Lpc = a.newlabel("Lcp"), a.newlabel("Lpc")
    a(f"s_cmp_eq_u32 s3, {wave}")
    a(f"s_cbranch_scc0 {L}")
    a(f"s_getpc_b64 s[{sb}:{sb+1}]")
    a.label(Lpc)
    a(f"s_add_u32 s{sb}, s{sb}, {start}-{Lpc}")
    a(f"s_addc_u32 s{sb+1}, s{sb+1}, 0")
    a(f"s_mov_b32 s{sb+2}, {end}-{start}-4")
    for k in range(nloads):
        a(f"v_lshlrev_b32 v{vtmp}, 7, v0")
        if k: a(f"v_add_u32 v{vtmp}, {8192*k}, v{vtmp}")
        a(f"v_min_u32 v{vtmp}, s{sb+2}, v{vtmp}")
        a(f"global_load_dword {dk}{vdst+k}, v{vtmp}, s[{sb}:{sb+1}]")
    a.label(L)

def prologue(a, opt):
    a(f"""
    s_cmp_ge_u32 s2, 256
    s_cbranch_scc1 L_exit
    s_load_dwordx16 s[56:71], s[0:1], 0
    s_load_dwordx8 s[72:79], s[0:1], 64
    s_load_dwordx2 s[80:81], s[0:1], 96
    v_lshrrev_b32 v1, 6, v0
    v_readfirstlane_b32 s3, v1
    v_and_b32 v0, 63, v0
    """)
    if opt.dxcc:
        a("s_waitcnt lgkmcnt(0)")
        srd(a, S_DBG, P_DBG, 256)
    if opt.dxcc:
        L = a.newlabel("Ldx")
        a("s_cmp_lt_u32 s2, 8")
        a(f"s_cbranch_scc0 {L}")
        a("""s_getreg_b32 s4, hwreg(HW_REG_XCC_ID)
        s_add_u32 s4, s4, 100
        s_lshl_b32 s5, s2, 2
        s_add_u32 s5, s5, 4
        v_mov_b32 v1, s4
        v_mov_b32 v2, s5""")
        a(f"buffer_store_dword v1, v2, s[{S_DBG}:{S_DBG+3}], 0 offen")
        a.label(L)

def build(opt):
    a = Asm()
    prologue(a, opt)
    a(f"""s_and_b32 s4, s2, 7
    s_cmp_eq_u32 s4, {opt.cx}
    s_cbranch_scc1 L_chain""")
    st = Stamp(a, opt.stamps, base=88, tmp=46, nmax=14)
    if opt.stamps:
        for k in range(14): a(f"s_mov_b32 s{88+k}, 0")
    if opt.attn: attention(a, opt, st)
    a("s_branch L_exit")
    a.label("L_chain")
    if opt.chain:
        import chain
        st = Stamp(a, opt.stamps)
        chain.chain(a, opt, st)
    a.label("L_exit")
    return a.text(256, 256, 160 * 1024, vgpr=512, sgpr=102, accum=256, header=opt.header)

if __name__ == "__main__":
    p = argparse.ArgumentParser()
    p.add_argument("--out", default="k.s")
    p.add_argument("--stamps", type=int, default=0)
    p.add_argument("--chain", type=int, default=1)
    p.add_argument("--kvflags", default="nt")
    p.add_argument("--vflags", default=None)
    p.add_argument("--spin", type=int, default=20000)
    p.add_argument("--kearly", type=int, default=1)
    p.add_argument("--wflags", default="nt")
    p.add_argument("--safe", type=int, default=0)
    p.add_argument("--attn", type=int, default=1)
    p.add_argument("--v2", type=int, default=1)
    p.add_argument("--gate", type=int, default=3)
    p.add_argument("--cpf", type=int, default=1)
    p.add_argument("--ilv", type=int, default=0)
    p.add_argument("--tlb", type=int, default=0)
    p.add_argument("--finen", type=int, default=2)
    p.add_argument("--cx", type=int, default=7)
    p.add_argument("--dxcc", type=int, default=0)
    p.add_argument("--wpf", type=int, default=0)
    p.add_argument("--wpfflags", default="")
    p.add_argument("--rflags", default=None)
    p.add_argument("--pre2", type=int, default=0)
    p.add_argument("--gsl", type=int, default=4)
    p.add_argument("--qkreload", type=int, default=5)
    p.add_argument("--pretouch", type=int, default=1)
    p.add_argument("--qsleep", type=int, default=1)
    p.add_argument("--gsleep", type=int, default=16)
    p.add_argument("--p2flags", default=None)
    p.add_argument("--eflag", type=int, default=0)
    p.add_argument("--ny", type=int, default=8)
    p.add_argument("--cap1", type=int, default=4)
    p.add_argument("--vahead", type=int, default=2)
    p.add_argument("--touch", type=int, default=0)
    p.add_argument("--tflags", default="")
    p.add_argument("--cap", type=int, default=16)
    p.add_argument("--initmark", type=int, default=0)
    opt = p.parse_args()
    opt.nchain = 32 if opt.chain else 0
    set_cap(opt.cap)
    ILV = opt.ilv
    set_vahead(opt.vahead)
    set_ny(opt.ny)
    opt.header = ""
    open(opt.out, "w").write(build(opt))
```
